```python
import torch

def _softmax(x, axis=-1):
    return torch.softmax(x, dim=axis)
def _gelu(x):
    return torch.nn.functional.gelu(x, approximate="tanh")
def _silu(x):
    return torch.nn.functional.silu(x)
def _sigmoid(x):
    return torch.sigmoid(x)
def _layernorm(x, axis=-1, eps=1e-5):
    m = x.mean(dim=axis, keepdim=True)
    v = x.var(dim=axis, keepdim=True, unbiased=False)
    return (x - m) / torch.sqrt(v + eps)
def _scatter_add(tgt, idx, src, axis=0):
    return tgt.clone().index_add_(axis, idx, src)
def _segment_sum(src, seg, n):
    out = torch.zeros((n,) + src.shape[1:], dtype=src.dtype)
    return out.index_add_(0, seg, src)
def _pad(x, pw):
    flat = tuple(v for pair in reversed(pw) for v in pair)
    return torch.nn.functional.pad(x, flat)

kernel_name = 'sequential_preLN__sliding_block_cached__glu_gated_reglu__decode'

def setup_inputs():

    _w = (lambda a: (lambda t: t.to(torch.bfloat16) if t.is_floating_point() else t)(torch.as_tensor(a)))
    def _A_setup():
        B, Sq, D = 1, 1, 1024
        Hq, Hkv, Sk, Dh = 32, 4, 65536, 128
        assert Hq % Hkv == 0, (Hq, Hkv)
        return {
            "x": _w((lambda *s: torch.randn(*s, dtype=torch.bfloat16) * 0.05)(B, Sq, D)),
            "k_cache": _w((lambda *s: torch.randn(*s, dtype=torch.bfloat16) * 1.6)(B, Hkv, Sk, Dh)),
            "v_cache": _w((lambda *s: torch.randn(*s, dtype=torch.bfloat16) * 0.8)(B, Hkv, Sk, Dh)),
            "wq": _w((lambda *s: torch.randn(*s, dtype=torch.bfloat16) * 1.6)(D, Hq * Dh) * (D ** -0.5)),
            "wo": _w((lambda *s: torch.randn(*s, dtype=torch.bfloat16) * 0.8)(Hq * Dh, D) * ((Hq * Dh) ** -0.5)),
        }
    _A_in = _A_setup()

    def _B_setup():
        B, S, D, F = 1, 1, 1024, 3584
        return {
            "x": _w((lambda *s: torch.randn(*s, dtype=torch.bfloat16) * 0.05)(B, S, D)),
            "W_gate": _w((lambda *s: torch.randn(*s, dtype=torch.bfloat16) * 0.4)(D, F) * (2.0 / D) ** 0.5),
            "W_up": _w((lambda *s: torch.randn(*s, dtype=torch.bfloat16) * 0.4)(D, F) * (2.0 / D) ** 0.5),
            "W_down": _w((lambda *s: torch.randn(*s, dtype=torch.bfloat16) * 0.4)(F, D) * (1.0 / F) ** 0.5),
        }
    _B_in = _B_setup()

    return {
        "A_x": _A_in["x"],
        "A_k_cache": _A_in["k_cache"],
        "A_v_cache": _A_in["v_cache"],
        "A_wq": _A_in["wq"],
        "A_wo": _A_in["wo"],
        "B_x": _B_in["x"],
        "B_W_gate": _B_in["W_gate"],
        "B_W_up": _B_in["W_up"],
        "B_W_down": _B_in["W_down"],
    }

def reference(A_x, A_k_cache, A_v_cache, A_wq, A_wo, B_x, B_W_gate, B_W_up, B_W_down):
    def _A_ref(x, k_cache, v_cache, wq, wo):
        B, Sq, D = x.shape
        Hq, Dh = 32, 128
        Hkv, Sk = k_cache.shape[1], k_cache.shape[2]
        W = min(4096, max(256, Sk // 4))
        rep = Hq // Hkv
        q = (lambda x, *d: x.permute(*d))((x @ wq).reshape(B, Sq, Hq, Dh), 0, 2, 1, 3)
        k = (lambda x, n, axis: torch.repeat_interleave(x, n, dim=axis))(k_cache[:, :, Sk - W:, :], rep, axis=1)
        v = (lambda x, n, axis: torch.repeat_interleave(x, n, dim=axis))(v_cache[:, :, Sk - W:, :], rep, axis=1)
        scores = torch.einsum("bhqd,bhkd->bhqk", q, k) * (Dh ** -0.5)
        p = _softmax(scores, axis=-1)
        o = torch.einsum("bhqk,bhkd->bhqd", p, v)
        return (lambda x, *d: x.permute(*d))(o, 0, 2, 1, 3).reshape(B, Sq, Hq * Dh) @ wo

    def _B_ref(x, W_gate, W_up, W_down):
        gate = torch.einsum("bsd,df->bsf", x, W_gate)
        up = torch.einsum("bsd,df->bsf", x, W_up)
        gate = gate * (lambda x, dt: x.to(dt))(gate > 0, gate.dtype)
        h = gate * up
        return torch.einsum("bsf,fd->bsd", h, W_down)

    x = A_x
    h = x + _A_ref(_layernorm(x, axis=-1), A_k_cache, A_v_cache, A_wq, A_wo)
    h2 = h + _B_ref(_layernorm(h, axis=-1), B_W_gate, B_W_up, B_W_down)
    return h2
```

```python
import re

def _regs(tok):
    tok = tok.strip()
    tok = tok.lstrip('-')
    if tok.startswith('abs(') or tok.startswith('|'):
        tok = tok.strip('|').replace('abs(', '').rstrip(')')
    m = re.fullmatch(r'([vsa])\[(\d+):(\d+)\]', tok)
    if m:
        return [(m.group(1), i) for i in range(int(m.group(2)), int(m.group(3)) + 1)]
    m = re.fullmatch(r'([vsa])(\d+)', tok)
    if m:
        return [(m.group(1), int(m.group(2)))]
    if tok in ('vcc', 'vcc_lo', 'vcc_hi'):
        return [('vcc', 0)]
    if tok in ('exec', 'exec_lo', 'exec_hi'):
        return [('exec', 0)]
    if tok == 'm0':
        return [('m0', 0)]
    return []

TRANS = ('v_exp_f32', 'v_log_f32', 'v_rcp_f32', 'v_rsq_f32', 'v_sqrt_f32', 'v_sin_f32', 'v_cos_f32')

class Ins:
    def __init__(self, text):
        self.text = text
        t = text.split(';')[0].strip()
        self.is_label = t.endswith(':')
        self.is_dir = t.startswith('.')
        self.op = t.split()[0] if t else ''
        rest = t[len(self.op):].strip()
        ops, depth, cur = [], 0, ''
        for ch in rest:
            if ch == '[': depth += 1
            if ch == ']': depth -= 1
            if ch == ',' and depth == 0:
                ops.append(cur.strip()); cur = ''
            else:
                cur += ch
        if cur.strip(): ops.append(cur.strip())
        self.mods = ''
        if ops:
            parts = ops[-1].split()
            if len(parts) > 1:
                ops[-1] = parts[0]; self.mods = ' '.join(parts[1:])
        self.ops = ops
        op = self.op
        self.valu = op.startswith('v_') and not op.startswith('v_mfma')
        self.mfma = op.startswith('v_mfma')
        self.salu = op.startswith('s_')
        self.ds = op.startswith('ds_')
        self.vmem = op.startswith('global_') or op.startswith('buffer_')
        self.dpp = ('row_' in t) or ('quad_perm' in t) or op.endswith('_dpp')
        self.perml = op.startswith('v_permlane')
        self.trans = op.replace('_e32', '').replace('_e64', '') in TRANS
        self.dot = op.startswith('v_dot')
        self.rdlane = op.startswith('v_readlane') or op.startswith('v_readfirstlane')
        self.w, self.r = [], []
        R = [_regs(o) for o in ops]
        if self.is_label or self.is_dir or not op:
            return
        if self.valu or self.mfma:
            if op.startswith('v_cmp'):
                self.w = R[0]; self.r = sum(R[1:], [])
                if op.startswith('v_cmpx'): self.w = self.w + [('exec', 0)]
            elif self.perml:
                self.w = R[0] + R[1]; self.r = R[0] + R[1]
            elif op.startswith('v_add_co') or op.startswith('v_addc_co') or op.startswith('v_sub_co'):
                self.w = R[0] + R[1]; self.r = sum(R[2:], [])
            else:
                self.w = R[0]; self.r = sum(R[1:], [])
                if op.startswith('v_dot2c') or op.startswith('v_fmac') or op.startswith('v_writelane'):
                    self.r = self.r + R[0]
                if op.startswith('v_cndmask') and len(ops) == 3:
                    self.r = self.r + [('vcc', 0)]
                if self.dpp and ('row_mask:0xf' not in t or 'bank_mask:0xf' not in t):
                    self.r = self.r + R[0]
        elif self.ds:
            if op.startswith('ds_read') or op.startswith('ds_bpermute') or op.startswith('ds_swizzle'):
                self.w = R[0]; self.r = sum(R[1:], [])
            else:
                self.r = sum(R, [])
        elif self.vmem:
            if '_load_lds_' in op:
                self.r = sum(R, []) + [('m0', 0)]
            elif '_load_' in op:
                self.w = R[0]; self.r = sum(R[1:], [])
            else:
                self.r = sum(R, [])
        elif self.salu:
            if op.startswith('s_cmp') or op.startswith('s_bitcmp') or op.startswith('s_cbranch') or op in ('s_waitcnt', 's_nop', 's_barrier', 's_branch', 's_endpgm', 's_setprio', 's_sleep'):
                self.r = sum(R, [])
            else:
                self.w = R[0] if R else []; self.r = sum(R[1:], [])
        self.store_wide = self.vmem and ('store_dwordx4' in op or 'store_dwordx3' in op)

    def states(self):
        if self.op == 's_nop':
            return int(self.ops[0]) + 1
        return 1

def need_wait(p, c):
    pw, cr, cw = set(p.w), set(c.r), set(c.w)
    pv = {x for x in pw if x[0] in 'va'}
    ps = {x for x in pw if x[0] in ('s', 'vcc')}
    n = 0
    if p.valu:
        if pv & cr:
            if c.dpp: n = max(n, 2)
            if c.perml: n = max(n, 2)
            if c.rdlane: n = max(n, 1)
            if c.mfma: n = max(n, 2)
            if p.trans and (c.valu and not c.trans): n = max(n, 1)
            if p.trans and (c.ds or c.vmem or c.mfma): n = max(n, 1)
        if p.dot and (pv & (cr | cw)):
            same = (c.op == p.op) and not (pv & set(x for o in c.ops[1:] for x in _regs(o)))
            if not same: n = max(n, 3)
        if ps & cr:
            if c.valu: n = max(n, 2)
            if c.vmem: n = max(n, 5)
            if c.rdlane: n = max(n, 4)
        if ('exec', 0) in pw and (c.valu or c.mfma): n = max(n, 5)
    if p.mfma:
        passes = 4 if '16x16' in p.op else 8
        big = {4: 8, 8: 12}[passes]
        if c.mfma:
            csrc = set(_regs(c.ops[3])) if len(c.ops) > 3 else set()
            ab = set(_regs(c.ops[1]) + _regs(c.ops[2]))
            if pv & ab: n = max(n, big)
            if pv & csrc and csrc != pv: n = max(n, big - 2)
            if (pv & set(c.w)) and not (pv & csrc): n = max(n, big)
        elif (pv & (cr | cw)):
            n = max(n, big)
        if c.valu and len(p.ops) > 3:
            if set(_regs(p.ops[3])) & cw: n = max(n, {4: 3, 8: 7}[passes])
    if getattr(p, 'store_wide', False):
        data = set(_regs(p.ops[1]))
        if (c.valu or c.mfma or c.ds or c.vmem) and (data & cw): n = max(n, 2)
    if p.salu and ('m0', 0) in pw and ('m0', 0) in cr: n = max(n, 1)
    return n

class Asm:
    def __init__(self):
        self.lines = []
    def __call__(self, s=''):
        for l in s.split('\n'):
            l = l.strip()
            if l: self.lines.append(l)
    def label(self, name):
        self.lines.append(name + ':')
    def finish(self):
        WIN = 14
        out = []
        pending = {}
        active = []
        labelpos = {}
        self.ninserted = 0
        def real(i): return not (i.is_label or i.is_dir or not i.op or i.text.startswith(';'))
        def need_vs(window, ins, dist0):
            need, dist = 0, dist0
            for p in reversed(window):
                if p.text == '.nofall': break
                if not real(p): continue
                if dist >= WIN: break
                k = need_wait(p, ins)
                if k > dist: need = max(need, k - dist)
                dist += p.states()
            return need
        def emit_nop(need):
            while need > 0:
                k = min(need, 16)
                n = Ins('s_nop %d' % (k - 1)); out.append(n); self.ninserted += 1
                for a in active: a[1] += k
                need -= k
        for l in self.lines:
            ins = Ins(l)
            if ins.is_label:
                name = l[:-1]
                labelpos[name] = len(out)
                for snap in pending.pop(name, []): active.append([snap, 0])
                out.append(ins); continue
            if not real(ins):
                out.append(ins); continue
            need = need_vs(out, ins, 0)
            for snap, d in active:
                need = max(need, need_vs(snap, ins, d))
            emit_nop(need)
            if ins.op.startswith('s_cbranch') or ins.op == 's_branch':
                tgt = ins.ops[0]
                if tgt in labelpos:
                    head = [x for x in out[labelpos[tgt]:] if real(x)][:WIN]
                    need, d = 0, 1
                    for h in head:
                        need = max(need, need_vs(out, h, d))
                        d += h.states()
                    emit_nop(need)
                else:
                    pending.setdefault(tgt, []).append([x for x in out if real(x)][-WIN:] + [ins])
            out.append(ins)
            for a in active: a[1] += ins.states()
            active[:] = [a for a in active if a[1] < WIN]
            if ins.op in ('s_branch', 's_endpgm'):
                out.append(Ins('; ---'))
                for _ in range(1): pass
                out.append(Ins('.nofall'))
        assert not pending, pending
        txt = []
        for i in out:
            if i.text == '.nofall': continue
            txt.append(('' if (i.is_label or i.is_dir) else '    ') + i.text)
        return '\n'.join(txt) + '\n'
```

```python
import sys
from asmlib import Asm

NAME = 'sequential_preLN__sliding_block_cached__glu_gated_reglu__decode'
OPT = dict(stamps=0, spin=400000)
for a in sys.argv[2:]:
    k, v = a.split('='); OPT[k] = int(v)

WS_EPOCH = 0
WS_QP = 0x1000
WS_OP = 0x10000
WS_ML = 0x90000
WS_AP = 0xA0000
WS_HS = 0xC0000
WS_GP = 0xC8000
WS_DP = 0xD8000
WS_TS = 0x100000

L_V   = 0
L_Q   = 32768
L_P   = L_Q + 2304
L_WM  = L_P + 2304
L_LS  = L_WM + 256
L_HS  = L_LS + 256
L_RED = L_HS + 4096
L_XO  = L_RED + 4096
LDS_BYTES = L_XO + 1024

S_X, S_K, S_V, S_WQ, S_WO, S_WG, S_WU, S_WD, S_OUT, S_DBG, S_WS = 4, 6, 8, 10, 12, 16, 18, 20, 22, 24, 26
S_N = 28
S_W = 32
S_IDX = 33
S_A, S_B, S_C, S_D = 34, 35, 36, 37
S_T0 = 38; S_T1 = 39
S_BA = 40
S_BB = 42
S_SELLO, S_SELHI, S_SELT01, S_SELT23, S_MASK = 44, 45, 46, 47, 48
S_SPIN = 49
S_M0, S_M1 = 50, 52
S_M3 = 54
S_E = 56
S_BC = 58
S_TS = 64

a = Asm()
nstamp = [0]
def sp(n): return 's[%d:%d]' % (n, n + 1)
def v(n, k=1): return 'v%d' % n if k == 1 else 'v[%d:%d]' % (n, n + k - 1)

def stamp(i):
    if OPT['stamps']:
        a('s_memrealtime %s' % sp(S_TS + 2 * i))

def write_stamps(n):
    if not OPT['stamps']: return
    a('s_waitcnt lgkmcnt(0)')
    set_exec(-1)
    a('v_mov_b32 v1, 0')
    for i in range(n):
        a('v_writelane_b32 v1, s%d, %d' % (S_TS + 2 * i, i))
    a('s_lshl_b32 s%d, s2, 3' % S_T0)
    a('s_add_u32 s%d, s%d, s%d' % (S_T0, S_T0, S_W))
    a('s_lshl_b32 s%d, s%d, 6' % (S_T0, S_T0))
    a('s_add_u32 s%d, s%d, %d' % (S_T0, S_T0, WS_TS))
    a('v_lshl_add_u32 v2, v0, 2, s%d' % S_T0)
    set_exec(0xffff)
    a('global_store_dword v2, v1, %s' % sp(S_WS))
    set_exec(-1)

def set_exec(x):
    if x == -1:
        a('s_mov_b64 exec, -1'); return
    a('s_mov_b32 exec_lo, 0x%x' % (x & 0xffffffff))
    a('s_mov_b32 exec_hi, 0x%x' % (x >> 32))

def base_add(dst, src, off_sgpr=None, off_imm=0):
    if off_sgpr is not None:
        a('s_add_u32 s%d, s%d, s%d' % (dst, src, off_sgpr)); a('s_addc_u32 s%d, s%d, 0' % (dst + 1, src + 1))
        if off_imm:
            a('s_add_u32 s%d, s%d, %d' % (dst, dst, off_imm)); a('s_addc_u32 s%d, s%d, 0' % (dst + 1, dst + 1))
    else:
        a('s_add_u32 s%d, s%d, %d' % (dst, src, off_imm)); a('s_addc_u32 s%d, s%d, 0' % (dst + 1, src + 1))

def tile_loads(dst, voff, base, stride, n, nt=True):
    f = ' nt' if nt else ''
    if stride <= 2048:
        per = 8192 // stride if stride else n
        i = 0
        a('s_add_u32 s%d, s%d, 4096' % (base, base)); a('s_addc_u32 s%d, s%d, 0' % (base + 1, base + 1))
        while i < n:
            off = (i % per) * stride - 4096
            if i and i % per == 0:
                a('s_add_u32 s%d, s%d, %d' % (base, base, per * stride)); a('s_addc_u32 s%d, s%d, 0' % (base + 1, base + 1))
            a('global_load_dwordx4 %s, %s, %s offset:%d%s' % (v(dst + 4 * i, 4), v(voff), sp(base), off, f))
            i += 1
    else:
        for i in range(n):
            if i:
                a('s_add_u32 s%d, s%d, %d' % (base, base, stride)); a('s_addc_u32 s%d, s%d, 0' % (base + 1, base + 1))
            a('global_load_dwordx4 %s, %s, %s%s' % (v(dst + 4 * i, 4), v(voff), sp(base), f))

DPP = 'row_mask:0xf bank_mask:0xf'
def allreduce(op, x, t, bits):
    ins = {'add': 'v_add_f32', 'max': 'v_max_f32'}[op]
    for b in bits:
        if b == 0: a('%s_dpp %s, %s, %s quad_perm:[1,0,3,2] %s' % (ins, v(x), v(x), v(x), DPP))
        elif b == 1: a('%s_dpp %s, %s, %s quad_perm:[2,3,0,1] %s' % (ins, v(x), v(x), v(x), DPP))
        elif b == 2 and 3 in bits and 1 not in bits or (b == 2 and 3 in bits):
            a('%s_dpp %s, %s, %s row_ror:4 %s' % (ins, v(x), v(x), v(x), DPP))
        elif b == 3: a('%s_dpp %s, %s, %s row_ror:8 %s' % (ins, v(x), v(x), v(x), DPP))
        elif b == 4:
            a('v_mov_b32 %s, %s' % (v(t), v(x))); a('v_permlane16_swap_b32 %s, %s' % (v(t), v(x))); a('%s %s, %s, %s' % (ins, v(x), v(x), v(t)))
        elif b == 5:
            a('v_mov_b32 %s, %s' % (v(t), v(x))); a('v_permlane32_swap_b32 %s, %s' % (v(t), v(x))); a('%s %s, %s, %s' % (ins, v(x), v(x), v(t)))
        else:
            raise Exception('bad bit')

def bf16r(x, t):
    a('v_cvt_pk_bf16_f32 %s, %s, %s' % (v(t), v(x), v(x)))
    a('v_lshlrev_b32 %s, 16, %s' % (v(x), v(t)))

def tag_check(g_list, t0, t1, acc):
    for i, g in enumerate(g_list):
        a('v_perm_b32 %s, %s, %s, s%d' % (v(t0), v(g + 1), v(g), S_SELT01))
        a('v_perm_b32 %s, %s, %s, s%d' % (v(t1), v(g + 3), v(g + 2), S_SELT23))
        if i == 0:
            a('v_or_b32 %s, %s, %s' % (v(t0), v(t0), v(t1)))
            a('v_xor_b32 %s, s%d, %s' % (v(acc), S_N, v(t0)))
        else:
            a('v_or_b32 %s, %s, %s' % (v(t0), v(t0), v(t1)))
            a('v_xor_b32 %s, s%d, %s' % (v(t0), S_N, v(t0)))
            a('v_or_b32 %s, %s, %s' % (v(acc), v(acc), v(t0)))
    a('v_cmp_ne_u32 vcc, 0, %s' % v(acc))

def untag(regs):
    for r in regs: a('v_and_b32 %s, s%d, %s' % (v(r), S_MASK, v(r)))

_lbl = [0]
def newlabel(p):
    _lbl[0] += 1
    return 'L_%s_%d' % (p, _lbl[0])

def poll(loads, check):
    L = newlabel('poll'); Lx = newlabel('pollx')
    a('s_mov_b32 s%d, %d' % (S_SPIN, OPT['spin']))
    a.label(L)
    loads()
    a('s_waitcnt vmcnt(0)')
    check()
    a('s_cbranch_vccz %s' % Lx)
    a('s_sub_u32 s%d, s%d, 1' % (S_SPIN, S_SPIN))
    a('s_cmp_lg_u32 s%d, 0' % S_SPIN)
    a('s_cbranch_scc1 %s' % L)
    a.label(Lx)

def gemv(W, X, ACC, T, nload, waits, zero=True):
    if zero:
        for e in range(8): a('v_mov_b32 %s, 0' % v(ACC + e))
    for p in range(nload // 2):
        if waits[p] is not None: a('s_waitcnt vmcnt(%d)' % waits[p])
        A_, B_ = W + 8 * p, W + 8 * p + 4
        for c in range(4):
            t0, t1 = T + 2 * (c & 1), T + 2 * (c & 1) + 1
            a('v_perm_b32 %s, %s, %s, s%d' % (v(t0), v(B_ + c), v(A_ + c), S_SELLO))
            a('v_perm_b32 %s, %s, %s, s%d' % (v(t1), v(B_ + c), v(A_ + c), S_SELHI))
            a('v_dot2c_f32_bf16 %s, %s, %s' % (v(ACC + 2 * c), v(t0), v(X + p)))
            a('v_dot2c_f32_bf16 %s, %s, %s' % (v(ACC + 2 * c + 1), v(t1), v(X + p)))

def reduce8(ACC):
    for e in range(4): a('v_permlane32_swap_b32 %s, %s' % (v(ACC + e), v(ACC + e + 4)))
    for e in range(4): a('v_add_f32 %s, %s, %s' % (v(ACC + e), v(ACC + e), v(ACC + e + 4)))
    for e in range(2): a('v_permlane16_swap_b32 %s, %s' % (v(ACC + e), v(ACC + e + 2)))
    for e in range(2): a('v_add_f32 %s, %s, %s' % (v(ACC + e), v(ACC + e), v(ACC + e + 2)))
    for e in range(2): a('v_add_f32_dpp %s, %s, %s row_ror:8 %s' % (v(ACC + e), v(ACC + e), v(ACC + e), DPP))
    a('v_cndmask_b32 %s, %s, %s, %s' % (v(ACC), v(ACC), v(ACC + 1), sp(S_M3)))

def scatter4_rows(G):
    a('v_permlane32_swap_b32 %s, %s' % (v(G), v(G + 2)))
    a('v_permlane32_swap_b32 %s, %s' % (v(G + 1), v(G + 3)))
    a('v_add_f32 %s, %s, %s' % (v(G), v(G), v(G + 2)))
    a('v_add_f32 %s, %s, %s' % (v(G + 1), v(G + 1), v(G + 3)))
    a('v_permlane16_swap_b32 %s, %s' % (v(G), v(G + 1)))
    a('v_add_f32 %s, %s, %s' % (v(G), v(G), v(G + 1)))

def ln_stats(VAL, T):
    s, tmp = T, T + 2
    a('v_add_f32 %s, %s, %s' % (v(s), v(VAL), v(VAL + 1)))
    a('v_add_f32 %s, %s, %s' % (v(T + 3), v(VAL + 2), v(VAL + 3)))
    for i in range(4, 16, 2):
        a('v_add_f32 %s, %s, %s' % (v(s), v(s), v(VAL + i)))
        a('v_add_f32 %s, %s, %s' % (v(T + 3), v(T + 3), v(VAL + i + 1)))
    a('v_add_f32 %s, %s, %s' % (v(s), v(s), v(T + 3)))
    allreduce('add', s, tmp, [0, 1, 2, 3, 4, 5])
    a('v_mul_f32 %s, 0x3a800000, %s' % (v(s), v(s)))
    q0, q1 = T + 3, T + 4
    for i in range(16):
        a('v_sub_f32 %s, %s, %s' % (v(VAL + i), v(VAL + i), v(s)))
    a('v_mul_f32 %s, %s, %s' % (v(q0), v(VAL), v(VAL)))
    a('v_mul_f32 %s, %s, %s' % (v(q1), v(VAL + 1), v(VAL + 1)))
    for i in range(2, 16, 2):
        a('v_fmac_f32 %s, %s, %s' % (v(q0), v(VAL + i), v(VAL + i)))
        a('v_fmac_f32 %s, %s, %s' % (v(q1), v(VAL + i + 1), v(VAL + i + 1)))
    a('v_add_f32 %s, %s, %s' % (v(q0), v(q0), v(q1)))
    allreduce('add', q0, tmp, [0, 1, 2, 3, 4, 5])
    a('v_mul_f32 %s, 0x3a800000, %s' % (v(q0), v(q0)))
    bf16r(q0, tmp)
    a('v_add_f32 %s, 0x3727c5ac, %s' % (v(q0), v(q0)))
    bf16r(q0, tmp)
    a('v_sqrt_f32 %s, %s' % (v(q0), v(q0)))
    bf16r(q0, tmp)
    a('v_rcp_f32 %s, %s' % (v(T + 1), v(q0)))
    bf16r(s, tmp)

def ln_apply(V8, M, RD, OUT, T):
    for i in range(8): a('v_sub_f32 %s, %s, %s' % (v(V8 + i), v(V8 + i), v(M)))
    for p in range(4):
        a('v_cvt_pk_bf16_f32 %s, %s, %s' % (v(T + p), v(V8 + 2 * p), v(V8 + 2 * p + 1)))
    for p in range(4):
        a('v_lshlrev_b32 %s, 16, %s' % (v(V8 + 2 * p), v(T + p)))
        a('v_and_b32 %s, 0xffff0000, %s' % (v(V8 + 2 * p + 1), v(T + p)))
    for i in range(8): a('v_mul_f32 %s, %s, %s' % (v(V8 + i), v(V8 + i), v(RD)))
    for p in range(4):
        a('v_cvt_pk_bf16_f32 %s, %s, %s' % (v(OUT + p), v(V8 + 2 * p), v(V8 + 2 * p + 1)))

def pub_lane(val, vtag, vff):
    a('v_add_u32 %s, 0x80, %s' % (v(val), v(val)))
    a('v_bfi_b32 %s, %s, %s, %s' % (v(val), v(vff), v(vtag), v(val)))

def pub_gran(g, vff):
    for e in range(4): a('v_add_u32 %s, 0x80, %s' % (v(g + e), v(g + e)))
    for e in range(4): a('v_bfi_b32 %s, %s, s%d, %s' % (v(g + e), v(vff), S_N + e, v(g + e)))

K = NAME + '_kernel'
hdr = []
hdr.append('; @launch grid=(256,1,1) block=(512,1,1) lds=%d' % LDS_BYTES)
hdr.append('.amdgcn_target "amdgcn-amd-amdhsa--gfx950"')
hdr.append('.text')
hdr.append('.globl %s' % K)
hdr.append('.p2align 8')
hdr.append('.type %s,@function' % K)

a.label(K)
a('s_cmp_ge_u32 s2, 256')
a('s_cbranch_scc1 L_end')
stamp(0)
a('s_load_dwordx16 s[4:19], s[0:1], 0')
a('s_load_dwordx8 s[20:27], s[0:1], 64')
a('v_lshrrev_b32 v1, 6, v0')
a('v_and_b32 v0, 63, v0')
a('v_readfirstlane_b32 s%d, v1' % S_W)
a('s_lshr_b32 s%d, s2, 4' % S_T0)
a('s_lshl_b32 s%d, s%d, 3' % (S_T0, S_T0))
a('s_and_b32 s%d, s2, 7' % S_T1)
a('s_or_b32 s%d, s%d, s%d' % (S_IDX, S_T0, S_T1))
a('s_mov_b32 s%d, 0x05040100' % S_SELLO)
a('s_mov_b32 s%d, 0x07060302' % S_SELHI)
a('s_mov_b32 s%d, 0x0c0c0400' % S_SELT01)
a('s_mov_b32 s%d, 0x04000c0c' % S_SELT23)
a('s_mov_b32 s%d, 0xffffff00' % S_MASK)
a('s_mov_b32 s%d, 0xaaaaaaaa' % S_M0); a('s_mov_b32 s%d, 0xaaaaaaaa' % (S_M0 + 1))
a('s_mov_b32 s%d, 0xcccccccc' % S_M1); a('s_mov_b32 s%d, 0xcccccccc' % (S_M1 + 1))
a('s_mov_b32 s%d, 0xff00ff00' % S_M3); a('s_mov_b32 s%d, 0xff00ff00' % (S_M3 + 1))
V_FF, V_TAG = 2, 3
a('v_mov_b32 %s, 0xff' % v(V_FF))
a('s_waitcnt lgkmcnt(0)')
a('s_load_dword s%d, %s, %d' % (S_E, sp(S_WS), WS_EPOCH))
a('s_bitcmp1_b32 s2, 3')
a('s_cbranch_scc1 L_P')

def nonce():
    a('s_waitcnt lgkmcnt(0)')
    a('s_add_u32 s%d, s%d, 1' % (S_E, S_E))
    a('s_mul_i32 s%d, s%d, 0x01010101' % (S_N, S_E))
    a('s_lshr_b32 s%d, s%d, 8' % (S_N + 1, S_N))
    a('s_lshr_b32 s%d, s%d, 16' % (S_N + 2, S_N))
    a('s_lshr_b32 s%d, s%d, 24' % (S_N + 3, S_N))
    a('v_and_b32 v1, 3, v0')
    a('v_lshlrev_b32 v1, 3, v1')
    a('v_lshrrev_b32 %s, v1, s%d' % (v(V_TAG), S_N))

W0 = 32
ACC = 64
XOP = 72
TMP = 76
VAL = 84
VA, VB, VC, VD = 4, 5, 6, 7
G0 = 8
U = 24

a('s_lshr_b32 s%d, s%d, 1' % (S_A, S_IDX))
a('s_and_b32 s%d, s%d, 1' % (S_B, S_IDX))
a('v_lshlrev_b32 %s, 5, v0' % v(VA))
a('global_load_dwordx4 %s, %s, %s' % (v(G0, 4), v(VA), sp(S_X)))
a('global_load_dwordx4 %s, %s, %s offset:16' % (v(G0 + 4, 4), v(VA), sp(S_X)))
a('s_lshl_b32 s%d, s%d, 9' % (S_T0, S_B))
a('s_lshl_b32 s%d, s%d, 6' % (S_T1, S_W))
a('s_add_u32 s%d, s%d, s%d' % (S_C, S_T0, S_T1))
a('v_and_b32 %s, 0x38, v0' % v(VB))
a('s_lshl_b32 s%d, s%d, 1' % (S_T0, S_C))
a('v_lshl_add_u32 %s, %s, 1, s%d' % (v(VC), v(VB), S_T0))
a('global_load_dwordx4 %s, %s, %s' % (v(G0 + 8, 4), v(VC), sp(S_X)))
a('v_lshlrev_b32 %s, 13, %s' % (v(VB), v(VB)))
a('v_and_b32 %s, 7, v0' % v(VC))
a('v_lshl_add_u32 %s, %s, 4, %s' % (v(VB), v(VC), v(VB)))
a('s_lshl_b32 s%d, s%d, 13' % (S_T0, S_C))
a('s_lshl_b32 s%d, s%d, 7' % (S_T1, S_A))
a('s_add_u32 s%d, s%d, s%d' % (S_T0, S_T0, S_T1))
base_add(S_BA, S_WQ, S_T0)
tile_loads(W0, VB, S_BA, 8192, 8)
stamp(1)
a('s_waitcnt vmcnt(8)')
for i in range(8):
    a('v_lshlrev_b32 %s, 16, %s' % (v(VAL + 2 * i), v(G0 + i)))
    a('v_and_b32 %s, 0xffff0000, %s' % (v(VAL + 2 * i + 1), v(G0 + i)))
ln_stats(VAL, TMP)
for i in range(4):
    a('v_lshlrev_b32 %s, 16, %s' % (v(VAL + 2 * i), v(G0 + 8 + i)))
    a('v_and_b32 %s, 0xffff0000, %s' % (v(VAL + 2 * i + 1), v(G0 + 8 + i)))
ln_apply(VAL, TMP, TMP + 1, XOP, TMP + 2)
nonce()
def col_addr(dst, t, base):
    a('v_and_b32 %s, 7, v0' % v(dst))
    a('v_lshlrev_b32 %s, 5, %s' % (v(dst), v(dst)))
    a('v_lshrrev_b32 %s, 1, v0' % v(t))
    a('v_and_b32 %s, 0x1c, %s' % (v(t), v(t)))
    a('v_add3_u32 %s, %s, %s, s%d' % (v(dst), v(dst), v(t), base))
a('s_lshl_b32 s%d, s%d, 8' % (S_T0, S_W))
col_addr(VD, VC, S_T0)
gemv(W0, XOP, ACC, TMP, 8, [6, 4, 2, 0])
stamp(2)
reduce8(ACC)
a('ds_write_b32 %s, %s offset:%d' % (v(VD), v(ACC), L_V))
a('s_waitcnt lgkmcnt(0)')
a('s_barrier')
a('s_cmp_lg_u32 s%d, 0' % S_W)
a('s_cbranch_scc1 L_Q_skip')
def finish8(n, addr, base_off, dst):
    for i in range(0, n, 2):
        if i + 1 < n: a('ds_read2st64_b32 %s, %s offset0:%d offset1:%d' % (v(dst + i, 2), v(addr), base_off // 256 + i, base_off // 256 + i + 1))
        else: a('ds_read_b32 %s, %s offset:%d' % (v(dst + i), v(addr), base_off + 256 * i))
    a('s_waitcnt lgkmcnt(0)')
    m = n
    while m > 1:
        h = (m + 1) // 2
        for i in range(m // 2): a('v_add_f32 %s, %s, %s' % (v(dst + i), v(dst + i), v(dst + h + i)))
        m = h
a('v_lshlrev_b32 %s, 2, v0' % v(VC))
finish8(8, VC, L_V, TMP)
pub_lane(TMP, V_TAG, V_FF)
a('s_lshr_b32 s%d, s%d, 4' % (S_T0, S_A)); a('s_lshl_b32 s%d, s%d, 13' % (S_T0, S_T0))
a('s_lshl_b32 s%d, s%d, 12' % (S_T1, S_B)); a('s_add_u32 s%d, s%d, s%d' % (S_T0, S_T0, S_T1))
a('s_and_b32 s%d, s%d, 15' % (S_T1, S_A)); a('s_lshl_b32 s%d, s%d, 8' % (S_T1, S_T1)); a('s_add_u32 s%d, s%d, s%d' % (S_T0, S_T0, S_T1))
base_add(S_BB, S_WS, S_T0, WS_QP)
a('global_store_dword %s, %s, %s sc1' % (v(VC), v(TMP), sp(S_BB)))
a.label('L_Q_skip')
a('s_barrier')
stamp(3)

a('s_lshr_b32 s%d, s%d, 2' % (S_A, S_IDX))
a('s_and_b32 s%d, s%d, 3' % (S_B, S_IDX))
a('s_lshl_b32 s%d, s%d, 7' % (S_T0, S_A)); a('s_lshl_b32 s%d, s%d, 4' % (S_T1, S_W)); a('s_add_u32 s%d, s%d, s%d' % (S_T0, S_T0, S_T1))
a('s_lshl_b32 s%d, s%d, 11' % (S_T0, S_T0)); a('s_lshl_b32 s%d, s%d, 9' % (S_T1, S_B)); a('s_add_u32 s%d, s%d, s%d' % (S_T0, S_T0, S_T1))
base_add(S_BA, S_WO, S_T0)
a('v_lshrrev_b32 %s, 5, v0' % v(VA)); a('v_lshlrev_b32 %s, 14, %s' % (v(VA), v(VA)))
a('v_and_b32 %s, 31, v0' % v(VB)); a('v_lshl_add_u32 %s, %s, 4, %s' % (v(VA), v(VB), v(VA)))
tile_loads(W0, VA, S_BA, 2048, 8)
a('s_lshl_b32 s%d, s%d, 14' % (S_T0, S_A)); a('s_lshl_b32 s%d, s%d, 6' % (S_T1, S_W)); a('s_add_u32 s%d, s%d, s%d' % (S_T0, S_T0, S_T1))
base_add(S_BA, S_WS, S_T0, WS_OP)
a('s_lshl_b32 s%d, s%d, 9' % (S_T0, S_A))
base_add(S_BB, S_WS, S_T0, WS_ML)
a('v_lshrrev_b32 %s, 2, v0' % v(VB))
a('v_and_b32 %s, 3, v0' % v(VC))
a('v_lshlrev_b32 %s, 4, %s' % (v(VC), v(VC)))
a('v_lshl_add_u32 %s, %s, 9, %s' % (v(VC), v(VB), v(VC)))
a('v_add_u32 %s, 0x2000, %s' % (v(VD), v(VC)))
a('v_lshlrev_b32 %s, 4, %s' % (v(VB), v(VB)))
a('s_waitcnt vmcnt(2)')
stamp(4)
def o_loads():
    a('global_load_dwordx4 %s, %s, %s sc1' % (v(G0, 4), v(VC), sp(S_BA)))
    a('global_load_dwordx4 %s, %s, %s sc1' % (v(G0 + 4, 4), v(VD), sp(S_BA)))
    a('global_load_dwordx4 %s, %s, %s sc1' % (v(G0 + 8, 4), v(VB), sp(S_BB)))
    a('global_load_dwordx4 %s, %s, %s offset:256 sc1' % (v(G0 + 12, 4), v(VB), sp(S_BB)))
poll(o_loads, lambda: tag_check([G0, G0 + 4, G0 + 8, G0 + 12], TMP, TMP + 1, TMP + 2))
stamp(5)
untag([G0 + i for i in range(8)] + [G0 + 8, G0 + 9, G0 + 12, G0 + 13])
M1, L1, M2, L2 = G0 + 8, G0 + 9, G0 + 12, G0 + 13
a('v_max_f32 %s, %s, %s' % (v(U), v(M1), v(M2)))
allreduce('max', U, U + 1, [2, 3, 4, 5])
a('s_mov_b32 s%d, 0x3fb8aa3b' % S_T0)
a('v_sub_f32 %s, %s, %s' % (v(M1), v(M1), v(U))); a('v_sub_f32 %s, %s, %s' % (v(M2), v(M2), v(U)))
a('v_mul_f32 %s, s%d, %s' % (v(M1), S_T0, v(M1))); a('v_mul_f32 %s, s%d, %s' % (v(M2), S_T0, v(M2)))
a('v_exp_f32 %s, %s' % (v(M1), v(M1))); a('v_exp_f32 %s, %s' % (v(M2), v(M2)))
a('v_mul_f32 %s, %s, %s' % (v(U + 2), v(M1), v(L1))); a('v_fmac_f32 %s, %s, %s' % (v(U + 2), v(M2), v(L2)))
for e in range(4):
    a('v_mul_f32 %s, %s, %s' % (v(G0 + e), v(G0 + e), v(M1)))
    a('v_fmac_f32 %s, %s, %s' % (v(G0 + e), v(G0 + 4 + e), v(M2)))
allreduce('add', U + 2, U + 1, [2, 3, 4, 5])
scatter4_rows(G0)
a('v_add_f32_dpp %s, %s, %s row_ror:4 %s' % (v(G0), v(G0), v(G0), DPP))
a('v_add_f32_dpp %s, %s, %s row_ror:8 %s' % (v(G0), v(G0), v(G0), DPP))
a('v_rcp_f32 %s, %s' % (v(U + 2), v(U + 2)))
a('v_mul_f32 %s, %s, %s' % (v(G0), v(G0), v(U + 2)))
a('v_cvt_pk_bf16_f32 %s, %s, %s' % (v(G0), v(G0), v(G0)))
a('s_lshl_b32 s%d, s%d, 7' % (S_T0, S_W)); a('s_add_u32 s%d, s%d, %d' % (S_T0, S_T0, L_XO))
a('v_and_b32 %s, 3, v0' % v(U)); a('v_lshlrev_b32 %s, 3, %s' % (v(U), v(U)))
a('v_lshrrev_b32 %s, 4, v0' % v(U + 1)); a('v_lshlrev_b32 %s, 1, %s' % (v(U + 1), v(U + 1)))
a('v_add3_u32 %s, %s, %s, s%d' % (v(U), v(U), v(U + 1), S_T0))
a('ds_write_b16 %s, %s' % (v(U), v(G0)))
a('v_lshrrev_b32 %s, 5, v0' % v(U + 1)); a('v_lshl_add_u32 %s, %s, 4, s%d' % (v(U + 1), v(U + 1), S_T0))
a('s_waitcnt lgkmcnt(0)')
a('ds_read_b128 %s, %s' % (v(XOP, 4), v(U + 1)))
a('s_waitcnt lgkmcnt(0)')
gemv(W0, XOP, ACC, TMP, 8, [None] * 4)
for e in range(4): a('v_permlane32_swap_b32 %s, %s' % (v(ACC + e), v(ACC + e + 4)))
for e in range(4): a('v_add_f32 %s, %s, %s' % (v(ACC + e), v(ACC + e), v(ACC + e + 4)))
a('v_and_b32 %s, 31, v0' % v(U)); a('v_lshlrev_b32 %s, 5, %s' % (v(U), v(U)))
a('v_lshrrev_b32 %s, 5, v0' % v(U + 1)); a('v_lshl_add_u32 %s, %s, 4, %s' % (v(U), v(U + 1), v(U)))
a('s_lshl_b32 s%d, s%d, 10' % (S_T0, S_W)); a('v_add_u32 %s, s%d, %s' % (v(U), S_T0, v(U)))
a('ds_write_b128 %s, %s offset:%d' % (v(U), v(ACC, 4), L_V))
a('s_waitcnt lgkmcnt(0)')
a('s_barrier')
stamp(6)
a('s_cmp_ge_u32 s%d, 4' % S_W)
a('s_cbranch_scc1 L_O_skip')
a('s_lshl_b32 s%d, s%d, 8' % (S_T0, S_W))
a('v_lshl_add_u32 %s, v0, 2, s%d' % (v(VC), S_T0))
for i in range(0, 8, 2):
    a('ds_read2st64_b32 %s, %s offset0:%d offset1:%d' % (v(TMP + i, 2), v(VC), L_V // 256 + 4 * i, L_V // 256 + 4 * i + 4))
a('s_waitcnt lgkmcnt(0)')
for (h, n) in ((4, 4), (2, 2), (1, 1)):
    for i in range(n): a('v_add_f32 %s, %s, %s' % (v(TMP + i), v(TMP + i), v(TMP + h + i)))
pub_lane(TMP, V_TAG, V_FF)
a('s_lshl_b32 s%d, s%d, 5' % (S_T0, S_B)); a('s_add_u32 s%d, s%d, s%d' % (S_T0, S_T0, S_A)); a('s_lshl_b32 s%d, s%d, 10' % (S_T0, S_T0))
base_add(S_BB, S_WS, S_T0, WS_AP)
a('global_store_dword %s, %s, %s sc1' % (v(VC), v(TMP), sp(S_BB)))
a.label('L_O_skip')
a('s_barrier')
stamp(7)

a('s_and_b32 s%d, s%d, 7' % (S_A, S_IDX))
a('s_lshr_b32 s%d, s%d, 3' % (S_B, S_IDX))
a('s_cmp_eq_u32 s%d, 7' % S_W)
a('s_cbranch_scc1 L_R_w7')
a('s_mul_i32 s%d, s%d, 448' % (S_T0, S_A)); a('s_lshl_b32 s%d, s%d, 6' % (S_T1, S_W)); a('s_add_u32 s%d, s%d, s%d' % (S_T0, S_T0, S_T1))
a('s_lshl_b32 s%d, s%d, 11' % (S_T0, S_T0)); a('s_lshl_b32 s%d, s%d, 7' % (S_T1, S_B)); a('s_add_u32 s%d, s%d, s%d' % (S_T0, S_T0, S_T1))
base_add(S_BA, S_WD, S_T0)
a('v_and_b32 %s, 0x38, v0' % v(VA)); a('v_lshlrev_b32 %s, 11, %s' % (v(VA), v(VA)))
a('v_and_b32 %s, 7, v0' % v(VB)); a('v_lshl_add_u32 %s, %s, 4, %s' % (v(VA), v(VB), v(VA)))
tile_loads(W0, VA, S_BA, 2048, 8)
a('s_mul_i32 s%d, s%d, 7' % (S_T0, S_A)); a('s_add_u32 s%d, s%d, s%d' % (S_T0, S_T0, S_W)); a('s_lshl_b32 s%d, s%d, 10' % (S_T0, S_T0))
base_add(S_BA, S_WS, S_T0, WS_GP)
a('v_and_b32 %s, 1, v0' % v(VB)); a('v_lshlrev_b32 %s, 9, %s' % (v(VB), v(VB)))
a('v_and_b32 %s, 2, v0' % v(VC)); a('v_lshl_add_u32 %s, %s, 7, %s' % (v(VB), v(VC), v(VB)))
a('v_lshrrev_b32 %s, 2, v0' % v(VC)); a('v_lshl_add_u32 %s, %s, 4, %s' % (v(VB), v(VC), v(VB)))
a('s_waitcnt vmcnt(0)')
stamp(8)
poll(lambda: a('global_load_dwordx4 %s, %s, %s sc1' % (v(G0, 4), v(VB), sp(S_BA))),
     lambda: tag_check([G0], TMP, TMP + 1, TMP + 2))
stamp(9)
untag([G0 + e for e in range(4)])
for e in range(4): a('v_add_f32_dpp %s, %s, %s quad_perm:[1,0,3,2] %s' % (v(G0 + e), v(G0 + e), v(G0 + e), DPP))
for p in range(2):
    a('v_cvt_pk_bf16_f32 %s, %s, %s' % (v(U + p), v(G0 + 2 * p), v(G0 + 2 * p + 1)))
for p in range(2):
    a('v_lshlrev_b32 %s, 16, %s' % (v(G0 + 2 * p), v(U + p)))
    a('v_and_b32 %s, 0xffff0000, %s' % (v(G0 + 2 * p + 1), v(U + p)))
for e in range(4): a('v_mov_b32_dpp %s, %s quad_perm:[2,3,0,1] %s' % (v(G0 + 4 + e), v(G0 + e), DPP))
for e in range(4):
    a('v_cmp_lt_f32 vcc, 0, %s' % v(G0 + e))
    a('v_cndmask_b32 %s, 0, %s, vcc' % (v(U + 2), v(G0 + e)))
    a('v_mul_f32 %s, %s, %s' % (v(G0 + e), v(U + 2), v(G0 + 4 + e)))
a('v_cvt_pk_bf16_f32 %s, %s, %s' % (v(U), v(G0), v(G0 + 1)))
a('v_cvt_pk_bf16_f32 %s, %s, %s' % (v(U + 1), v(G0 + 2), v(G0 + 3)))
a('s_lshl_b32 s%d, s%d, 7' % (S_T0, S_W)); a('s_add_u32 s%d, s%d, %d' % (S_T0, S_T0, L_XO))
a('v_lshrrev_b32 %s, 2, v0' % v(U + 2)); a('v_lshl_add_u32 %s, %s, 3, s%d' % (v(U + 2), v(U + 2), S_T0))
set_exec(0x1111111111111111)
a('ds_write_b64 %s, %s' % (v(U + 2), v(U, 2)))
set_exec(-1)
a('v_and_b32 %s, 0x38, v0' % v(U + 3)); a('v_lshl_add_u32 %s, %s, 1, s%d' % (v(U + 3), v(U + 3), S_T0))
a('s_waitcnt lgkmcnt(0)')
a('ds_read_b128 %s, %s' % (v(XOP, 4), v(U + 3)))
a('s_lshl_b32 s%d, s%d, 8' % (S_T0, S_W))
col_addr(VD, VC, S_T0)
a('s_waitcnt lgkmcnt(0)')
gemv(W0, XOP, ACC, TMP, 8, [None] * 4)
reduce8(ACC)
a('ds_write_b32 %s, %s offset:%d' % (v(VD), v(ACC), L_V))
a('s_waitcnt lgkmcnt(0)')
a('s_barrier')
stamp(10)
write_stamps(11)
a('s_endpgm')

a.label('L_R_w7')
a('s_cmp_ge_u32 s%d, 64' % S_IDX)
a('s_cbranch_scc1 L_H_skip')
a('s_lshr_b32 s%d, s%d, 4' % (S_T0, S_IDX)); a('s_lshl_b32 s%d, s%d, 15' % (S_T0, S_T0))
a('s_and_b32 s%d, s%d, 15' % (S_T1, S_IDX)); a('s_lshl_b32 s%d, s%d, 6' % (S_T1, S_T1)); a('s_add_u32 s%d, s%d, s%d' % (S_T0, S_T0, S_T1))
base_add(S_BA, S_WS, S_T0, WS_AP)
a('v_and_b32 %s, 15, v0' % v(VA)); a('v_lshlrev_b32 %s, 10, %s' % (v(VA), v(VA)))
a('v_lshrrev_b32 %s, 4, v0' % v(VB)); a('v_lshl_add_u32 %s, %s, 4, %s' % (v(VA), v(VB), v(VA)))
a('v_add_u32 %s, 0x4000, %s' % (v(VC), v(VA)))
a('v_and_b32 %s, 3, v0' % v(VD)); a('v_lshl_add_u32 %s, %s, 2, %s' % (v(VD), v(VB), v(VD)))
a('s_lshl_b32 s%d, s%d, 4' % (S_T0, S_IDX)); a('v_add_u32 %s, s%d, %s' % (v(VD), S_T0, v(VD)))
a('v_lshlrev_b32 %s, 1, %s' % (v(U), v(VD)))
a('global_load_ushort %s, %s, %s' % (v(U + 1), v(U), sp(S_X)))
def h_loads():
    a('global_load_dwordx4 %s, %s, %s sc1' % (v(G0, 4), v(VA), sp(S_BA)))
    a('global_load_dwordx4 %s, %s, %s sc1' % (v(G0 + 4, 4), v(VC), sp(S_BA)))
poll(h_loads, lambda: tag_check([G0, G0 + 4], TMP, TMP + 1, TMP + 2))
stamp(8)
untag([G0 + i for i in range(8)])
for e in range(4): a('v_add_f32 %s, %s, %s' % (v(G0 + e), v(G0 + e), v(G0 + 4 + e)))
for e in range(2):
    a('v_cndmask_b32 %s, %s, %s, %s' % (v(G0 + 4 + e), v(G0 + e), v(G0 + 2 + e), sp(S_M1)))
    a('v_cndmask_b32 %s, %s, %s, %s' % (v(G0 + 6 + e), v(G0 + 2 + e), v(G0 + e), sp(S_M1)))
for e in range(2):
    a('v_add_f32_dpp %s, %s, %s quad_perm:[2,3,0,1] %s' % (v(G0 + e), v(G0 + 6 + e), v(G0 + 4 + e), DPP))
a('v_cndmask_b32 %s, %s, %s, %s' % (v(G0 + 4), v(G0), v(G0 + 1), sp(S_M0)))
a('v_cndmask_b32 %s, %s, %s, %s' % (v(G0 + 5), v(G0 + 1), v(G0), sp(S_M0)))
a('v_add_f32_dpp %s, %s, %s quad_perm:[1,0,3,2] %s' % (v(G0), v(G0 + 5), v(G0 + 4), DPP))
a('v_add_f32_dpp %s, %s, %s row_ror:4 %s' % (v(G0), v(G0), v(G0), DPP))
a('v_add_f32_dpp %s, %s, %s row_ror:8 %s' % (v(G0), v(G0), v(G0), DPP))
bf16r(G0, TMP)
a('v_lshlrev_b32 %s, 16, %s' % (v(U + 1), v(U + 1)))
a('v_add_f32 %s, %s, %s' % (v(G0), v(G0), v(U + 1)))
bf16r(G0, TMP)
a('v_bfi_b32 %s, %s, %s, %s' % (v(G0), v(V_FF), v(V_TAG), v(G0)))
a('v_lshlrev_b32 %s, 2, %s' % (v(VD), v(VD)))
base_add(S_BC, S_WS, None, WS_HS)
set_exec(0xf000f000f000f)
a('global_store_dword %s, %s, %s sc1' % (v(VD), v(G0), sp(S_BC)))
set_exec(-1)
a.label('L_H_skip')
stamp(9)
a('s_barrier')
a('v_lshlrev_b32 %s, 2, v0' % v(VC))
finish8(7, VC, L_V, TMP)
pub_lane(TMP, V_TAG, V_FF)
a('s_lshl_b32 s%d, s%d, 3' % (S_T0, S_B)); a('s_add_u32 s%d, s%d, s%d' % (S_T0, S_T0, S_A)); a('s_lshl_b32 s%d, s%d, 8' % (S_T0, S_T0))
base_add(S_BB, S_WS, S_T0, WS_DP)
a('global_store_dword %s, %s, %s sc1' % (v(VC), v(TMP), sp(S_BB)))
stamp(10)
a('s_and_b32 s%d, s%d, 7' % (S_T0, S_B))
a('s_cmp_lg_u32 s%d, s%d' % (S_T0, S_A))
a('s_cbranch_scc1 L_F_skip')
a('s_lshl_b32 s%d, s%d, 11' % (S_T0, S_B))
base_add(S_BA, S_WS, S_T0, WS_DP)
a('v_and_b32 %s, 15, v0' % v(VA)); a('v_lshlrev_b32 %s, 4, %s' % (v(VA), v(VA)))
a('v_lshrrev_b32 %s, 4, v0' % v(VB)); a('v_lshl_add_u32 %s, %s, 8, %s' % (v(VA), v(VB), v(VA)))
a('v_and_b32 %s, 15, v0' % v(VC)); a('v_lshl_add_u32 %s, %s, 2, %s' % (v(VC), v(VC), v(VB)))
a('s_lshl_b32 s%d, s%d, 6' % (S_T0, S_B)); a('v_add_u32 %s, s%d, %s' % (v(VC), S_T0, v(VC)))
a('v_lshlrev_b32 %s, 2, %s' % (v(VD), v(VC)))
base_add(S_BC, S_WS, None, WS_HS)
a('v_lshlrev_b32 %s, 3, %s' % (v(U), v(VB))); a('v_lshrrev_b32 %s, %s, s%d' % (v(U), v(U), S_N))
def f_loads():
    a('global_load_dwordx4 %s, %s, %s sc1' % (v(G0, 4), v(VA), sp(S_BA)))
    a('global_load_dwordx4 %s, %s, %s offset:1024 sc1' % (v(G0 + 4, 4), v(VA), sp(S_BA)))
    a('global_load_dword %s, %s, %s sc1' % (v(G0 + 8), v(VD), sp(S_BC)))
def f_check():
    tag_check([G0, G0 + 4], TMP, TMP + 1, TMP + 2)
    a('v_xor_b32 %s, %s, %s' % (v(TMP), v(G0 + 8), v(U)))
    a('v_and_b32 %s, 0xff, %s' % (v(TMP), v(TMP)))
    a('v_or_b32 %s, %s, %s' % (v(TMP + 2), v(TMP + 2), v(TMP)))
    a('v_cmp_ne_u32 vcc, 0, %s' % v(TMP + 2))
poll(f_loads, f_check)
stamp(11)
untag([G0 + i for i in range(9)])
for e in range(4): a('v_add_f32 %s, %s, %s' % (v(G0 + e), v(G0 + e), v(G0 + 4 + e)))
scatter4_rows(G0)
bf16r(G0, TMP)
a('v_add_f32 %s, %s, %s' % (v(G0), v(G0), v(G0 + 8)))
a('v_cvt_pk_bf16_f32 %s, %s, %s' % (v(G0), v(G0), v(G0)))
a('v_lshlrev_b32 %s, 1, %s' % (v(VC), v(VC)))
a('global_store_short %s, %s, %s' % (v(VC), v(G0), sp(S_OUT)))
a('s_cmp_lg_u32 s%d, 0' % S_B)
a('s_cbranch_scc1 L_F_skip')
a('v_mov_b32 %s, s%d' % (v(U), S_E)); a('v_mov_b32 %s, 0' % v(U + 1))
set_exec(0x1)
a('global_store_dword %s, %s, %s sc1' % (v(U + 1), v(U), sp(S_WS)))
set_exec(-1)
a.label('L_F_skip')
stamp(12)
write_stamps(13)
a('s_endpgm')

a.label('L_P')
KR = 32
VT = 48
QF = 64
SD = 72
PF = 80
OD = 96
a('s_and_b32 s%d, s%d, 7' % (S_T0, S_IDX)); a('s_lshr_b32 s%d, s%d, 1' % (S_A, S_T0))
a('s_lshr_b32 s%d, s%d, 3' % (S_T0, S_IDX)); a('s_lshl_b32 s%d, s%d, 1' % (S_T0, S_T0))
a('s_and_b32 s%d, s%d, 1' % (S_T1, S_IDX)); a('s_or_b32 s%d, s%d, s%d' % (S_B, S_T0, S_T1))
a('s_lshl_b32 s%d, s%d, 24' % (S_T0, S_A))
a('s_lshl_b32 s%d, s%d, 15' % (S_T1, S_B)); a('s_add_u32 s%d, s%d, s%d' % (S_T0, S_T0, S_T1))
a('s_lshl_b32 s%d, s%d, 12' % (S_T1, S_W)); a('s_add_u32 s%d, s%d, s%d' % (S_T0, S_T0, S_T1))
a('s_add_u32 s%d, s%d, %d' % (S_T0, S_T0, 61440 * 256))
base_add(S_BA, S_K, S_T0)
base_add(S_BB, S_V, S_T0)
a('v_and_b32 %s, 7, v0' % v(VA)); a('v_lshlrev_b32 %s, 8, %s' % (v(VA), v(VA)))
a('v_and_b32 %s, 8, v0' % v(VB)); a('v_lshl_add_u32 %s, %s, 3, %s' % (v(VA), v(VB), v(VA)))
a('v_lshrrev_b32 %s, 4, v0' % v(VB)); a('v_lshl_add_u32 %s, %s, 4, %s' % (v(VA), v(VB), v(VA)))
for kg in range(2):
    for db in range(2):
        a('global_load_dwordx4 %s, %s, %s offset:%d nt' % (v(KR + 4 * (2 * kg + db), 4), v(VA), sp(S_BA), kg * 2048 + db * 128))
a('v_lshrrev_b32 %s, 4, v0' % v(VB))
a('v_lshlrev_b32 %s, 1, %s' % (v(VC), v(VB)))
a('v_and_b32 %s, 15, v0' % v(VD)); a('v_xor_b32 %s, %s, %s' % (v(VC), v(VC), v(VD)))
a('v_lshlrev_b32 %s, 4, %s' % (v(VC), v(VC)))
a('v_lshl_add_u32 %s, %s, 8, %s' % (v(VC), v(VB), v(VC)))
a('v_xor_b32 %s, 0x80, %s' % (v(VD), v(VC)))
a('s_lshl_b32 s%d, s%d, 12' % (S_T0, S_W)); a('s_add_u32 s%d, s%d, %d' % (S_T0, S_T0, L_V))
a('s_mov_b32 m0, s%d' % S_T0)
for n in range(4):
    a('global_load_lds_dwordx4 %s, %s offset:%d nt' % (v(VC if n < 2 else VD), sp(S_BB), n * 1024))
stamp(1)
nonce()
a('s_lshl_b32 s%d, s%d, 13' % (S_T0, S_A)); a('s_lshl_b32 s%d, s%d, 9' % (S_T1, S_W)); a('s_add_u32 s%d, s%d, s%d' % (S_T0, S_T0, S_T1))
base_add(S_BA, S_WS, S_T0, WS_QP)
a('v_lshrrev_b32 %s, 5, v0' % v(VA)); a('v_lshlrev_b32 %s, 12, %s' % (v(VA), v(VA)))
a('v_and_b32 %s, 31, v0' % v(VB)); a('v_lshl_add_u32 %s, %s, 4, %s' % (v(VA), v(VB), v(VA)))
a('s_mul_i32 s%d, s%d, 272' % (S_T0, S_W)); a('s_add_u32 s%d, s%d, %d' % (S_T0, S_T0, L_Q))
a('v_lshrrev_b32 %s, 5, v0' % v(VC)); a('v_lshlrev_b32 %s, 2, %s' % (v(VC), v(VC)))
a('v_lshl_add_u32 %s, %s, 3, %s' % (v(VC), v(VB), v(VC))); a('v_add_u32 %s, s%d, %s' % (v(VC), S_T0, v(VC)))
a('v_and_b32 %s, 7, v0' % v(VD)); a('v_mul_u32_u24 %s, 272, %s' % (v(VD), v(VD)))
a('v_and_b32 %s, 8, v0' % v(U)); a('v_lshl_add_u32 %s, %s, 3, %s' % (v(VD), v(U), v(VD)))
a('v_lshrrev_b32 %s, 4, v0' % v(U)); a('v_lshl_add_u32 %s, %s, 4, %s' % (v(VD), v(U), v(VD)))
a('s_waitcnt vmcnt(3)')
stamp(2)
poll(lambda: a('global_load_dwordx4 %s, %s, %s sc1' % (v(G0, 4), v(VA), sp(S_BA))),
     lambda: tag_check([G0], TMP + 24, TMP + 25, TMP + 26))
stamp(3)
untag([G0 + e for e in range(4)])
a('v_permlane32_swap_b32 %s, %s' % (v(G0), v(G0 + 2)))
a('v_permlane32_swap_b32 %s, %s' % (v(G0 + 1), v(G0 + 3)))
a('v_add_f32 %s, %s, %s' % (v(G0), v(G0), v(G0 + 2)))
a('v_add_f32 %s, %s, %s' % (v(G0 + 1), v(G0 + 1), v(G0 + 3)))
a('v_cvt_pk_bf16_f32 %s, %s, %s' % (v(G0), v(G0), v(G0 + 1)))
a('ds_write_b32 %s, %s' % (v(VC), v(G0)))
a('s_waitcnt lgkmcnt(0)')
a('s_barrier')
a('ds_read_b128 %s, %s offset:%d' % (v(QF, 4), v(VD), L_Q))
a('ds_read_b128 %s, %s offset:%d' % (v(QF + 4, 4), v(VD), L_Q + 128))
a('v_lshrrev_b32 %s, 4, v0' % v(U))
a('v_bfe_u32 %s, v0, 2, 2' % v(U + 1))
a('v_lshl_add_u32 %s, %s, 3, %s' % (v(U + 2), v(U), v(U + 1)))
a('v_lshlrev_b32 %s, 8, %s' % (v(U + 2), v(U + 2)))
a('v_and_b32 %s, 1, %s' % (v(U), v(U))); a('v_lshl_or_b32 %s, %s, 2, %s' % (v(U), v(U), v(U + 1)))
a('v_xor_b32 %s, s%d, %s' % (v(U), S_W, v(U)))
a('v_lshlrev_b32 %s, 5, %s' % (v(U), v(U)))
a('v_bfe_u32 %s, v0, 1, 1' % v(U + 1)); a('v_lshl_add_u32 %s, %s, 4, %s' % (v(U), v(U + 1), v(U)))
a('v_and_b32 %s, 1, v0' % v(U + 1)); a('v_lshl_add_u32 %s, %s, 3, %s' % (v(U), v(U + 1), v(U)))
a('v_add_u32 %s, %s, %s' % (v(U), v(U), v(U + 2)))
for s_ in range(4):
    for t_ in range(2):
        a('ds_read_b64_tr_b16 %s, %s offset:%d' % (v(VT + 4 * s_ + 2 * t_, 2), v(U), L_V + s_ * 8192 + t_ * 1024))
a('s_waitcnt lgkmcnt(8)')
for db in range(2):
    for kg in range(2):
        a('v_mfma_f32_16x16x32_bf16 %s, %s, %s, %s' % (v(SD + 4 * kg, 4), v(KR + 4 * (2 * kg + db), 4), v(QF + 4 * db, 4), '0' if db == 0 else v(SD + 4 * kg, 4)))
for r in range(4): a('v_permlane32_swap_b32 %s, %s' % (v(SD + r), v(SD + 4 + r)))
for r in range(4): a('v_add_f32_dpp %s, %s, %s row_ror:8 %s' % (v(SD + r), v(SD + 4 + r), v(SD + r), DPP))
for p in range(2): a('v_cvt_pk_bf16_f32 %s, %s, %s' % (v(SD + 4 + p), v(SD + 2 * p), v(SD + 2 * p + 1)))
for p in range(2):
    a('v_lshlrev_b32 %s, 16, %s' % (v(SD + 2 * p), v(SD + 4 + p)))
    a('v_and_b32 %s, 0xffff0000, %s' % (v(SD + 2 * p + 1), v(SD + 4 + p)))
a('s_mov_b32 s%d, 0x3db504f3' % S_T0)
for r in range(4): a('v_mul_f32 %s, s%d, %s' % (v(SD + r), S_T0, v(SD + r)))
for p in range(2): a('v_cvt_pk_bf16_f32 %s, %s, %s' % (v(SD + 4 + p), v(SD + 2 * p), v(SD + 2 * p + 1)))
for p in range(2):
    a('v_lshlrev_b32 %s, 16, %s' % (v(SD + 2 * p), v(SD + 4 + p)))
    a('v_and_b32 %s, 0xffff0000, %s' % (v(SD + 2 * p + 1), v(SD + 4 + p)))
a('v_max3_f32 %s, %s, %s, %s' % (v(U), v(SD), v(SD + 1), v(SD + 2)))
a('v_max_f32 %s, %s, %s' % (v(U), v(U), v(SD + 3)))
allreduce('max', U, U + 1, [4, 5])
a('v_and_b32 %s, 7, v0' % v(U + 2)); a('v_lshlrev_b32 %s, 5, %s' % (v(U + 2), v(U + 2)))
a('s_lshl_b32 s%d, s%d, 2' % (S_T0, S_W)); a('v_add_u32 %s, s%d, %s' % (v(U + 3), S_T0, v(U + 2)))
set_exec(0xff)
a('ds_write_b32 %s, %s offset:%d' % (v(U + 3), v(U), L_WM))
set_exec(-1)
a('s_waitcnt lgkmcnt(0)')
a('s_barrier')
a('ds_read_b128 %s, %s offset:%d' % (v(G0, 4), v(U + 2), L_WM))
a('ds_read_b128 %s, %s offset:%d' % (v(G0 + 4, 4), v(U + 2), L_WM + 16))
a('s_waitcnt lgkmcnt(0)')
a('v_max3_f32 %s, %s, %s, %s' % (v(G0), v(G0), v(G0 + 1), v(G0 + 2)))
a('v_max3_f32 %s, %s, %s, %s' % (v(G0 + 3), v(G0 + 3), v(G0 + 4), v(G0 + 5)))
a('v_max3_f32 %s, %s, %s, %s' % (v(G0), v(G0), v(G0 + 6), v(G0 + 7)))
a('v_max_f32 %s, %s, %s' % (v(G0), v(G0), v(G0 + 3)))
a('s_mov_b32 s%d, 0x3fb8aa3b' % S_T0)
for r in range(4): a('v_sub_f32 %s, %s, %s' % (v(SD + r), v(SD + r), v(G0)))
for r in range(4): a('v_mul_f32 %s, s%d, %s' % (v(SD + r), S_T0, v(SD + r)))
for r in range(4): a('v_exp_f32 %s, %s' % (v(SD + r), v(SD + r)))
a('v_add_f32 %s, %s, %s' % (v(U), v(SD), v(SD + 1))); a('v_add_f32 %s, %s, %s' % (v(U + 1), v(SD + 2), v(SD + 3)))
a('v_cvt_pk_bf16_f32 %s, %s, %s' % (v(SD + 4), v(SD), v(SD + 1)))
a('v_cvt_pk_bf16_f32 %s, %s, %s' % (v(SD + 5), v(SD + 2), v(SD + 3)))
a('v_add_f32 %s, %s, %s' % (v(U), v(U), v(U + 1)))
a('v_and_b32 %s, 7, v0' % v(U + 4)); a('v_mul_u32_u24 %s, 272, %s' % (v(U + 4), v(U + 4)))
a('v_lshrrev_b32 %s, 4, v0' % v(U + 5)); a('v_lshl_add_u32 %s, %s, 3, %s' % (v(U + 5), v(U + 5), v(U + 4)))
a('s_lshl_b32 s%d, s%d, 5' % (S_T0, S_W)); a('v_add_u32 %s, s%d, %s' % (v(U + 5), S_T0, v(U + 5)))
set_exec(0xff00ff00ff00ff)
a('ds_write_b64 %s, %s offset:%d' % (v(U + 5), v(SD + 4, 2), L_P))
set_exec(-1)
allreduce('add', U, U + 1, [4, 5])
set_exec(0xff)
a('ds_write_b32 %s, %s offset:%d' % (v(U + 3), v(U), L_LS))
set_exec(-1)
a('s_waitcnt lgkmcnt(0)')
a('s_barrier')
a('v_lshrrev_b32 %s, 4, v0' % v(U + 5)); a('v_lshl_add_u32 %s, %s, 4, %s' % (v(U + 5), v(U + 5), v(U + 4)))
for s_ in range(4): a('ds_read_b128 %s, %s offset:%d' % (v(PF + 4 * s_, 4), v(U + 5), L_P + 64 * s_))
a('ds_read_b128 %s, %s offset:%d' % (v(G0 + 4, 4), v(U + 2), L_LS))
a('ds_read_b128 %s, %s offset:%d' % (v(G0 + 8, 4), v(U + 2), L_LS + 16))
for s_ in range(4):
    a('s_waitcnt lgkmcnt(%d)' % (5 - s_))
    a('v_mfma_f32_16x16x32_bf16 %s, %s, %s, %s' % (v(OD, 4), v(VT + 4 * s_, 4), v(PF + 4 * s_, 4), '0' if s_ == 0 else v(OD, 4)))
a('s_lshl_b32 s%d, s%d, 17' % (S_T0, S_A)); a('s_lshl_b32 s%d, s%d, 9' % (S_T1, S_B)); a('s_add_u32 s%d, s%d, s%d' % (S_T0, S_T0, S_T1))
a('s_lshl_b32 s%d, s%d, 6' % (S_T1, S_W)); a('s_add_u32 s%d, s%d, s%d' % (S_T0, S_T0, S_T1))
base_add(S_BA, S_WS, S_T0, WS_OP)
a('v_and_b32 %s, 7, v0' % v(VA)); a('v_lshlrev_b32 %s, 14, %s' % (v(VA), v(VA)))
a('v_lshrrev_b32 %s, 4, v0' % v(VB)); a('v_lshl_add_u32 %s, %s, 4, %s' % (v(VA), v(VB), v(VA)))
pub_gran(OD, V_FF)
set_exec(0xff00ff00ff00ff)
a('global_store_dwordx4 %s, %s, %s sc1' % (v(VA), v(OD, 4), sp(S_BA)))
set_exec(-1)
a('s_cmp_lg_u32 s%d, 0' % S_W)
a('s_cbranch_scc1 L_A_skip')
a('s_waitcnt lgkmcnt(0)')
for i in range(4): a('v_add_f32 %s, %s, %s' % (v(G0 + 4 + i), v(G0 + 4 + i), v(G0 + 8 + i)))
a('v_add_f32 %s, %s, %s' % (v(G0 + 4), v(G0 + 4), v(G0 + 6))); a('v_add_f32 %s, %s, %s' % (v(G0 + 5), v(G0 + 5), v(G0 + 7)))
a('v_add_f32 %s, %s, %s' % (v(G0 + 1), v(G0 + 4), v(G0 + 5)))
a('v_mov_b32 %s, 0' % v(G0 + 2)); a('v_mov_b32 %s, 0' % v(G0 + 3))
a('v_add_u32 %s, 0x80, %s' % (v(G0 + 1), v(G0 + 1)))
for e in range(4): a('v_bfi_b32 %s, %s, s%d, %s' % (v(G0 + e), v(V_FF), S_N + e, v(G0 + e)))
a('s_lshl_b32 s%d, s%d, 12' % (S_T0, S_A)); a('s_lshl_b32 s%d, s%d, 4' % (S_T1, S_B)); a('s_add_u32 s%d, s%d, s%d' % (S_T0, S_T0, S_T1))
base_add(S_BB, S_WS, S_T0, WS_ML)
a('v_and_b32 %s, 7, v0' % v(VB)); a('v_lshlrev_b32 %s, 9, %s' % (v(VB), v(VB)))
set_exec(0xff)
a('global_store_dwordx4 %s, %s, %s sc1' % (v(VB), v(G0, 4), sp(S_BB)))
set_exec(-1)
a.label('L_A_skip')
a('s_barrier')
stamp(4)

a('s_lshr_b32 s%d, s%d, 3' % (S_T0, S_IDX))
a('s_cmp_ge_u32 s%d, 14' % S_T0)
a('s_cbranch_scc1 L_P_done')
a('s_and_b32 s%d, s%d, 1' % (S_B, S_T0))
a('s_lshr_b32 s%d, s%d, 1' % (S_T0, S_T0))
a('s_and_b32 s%d, s%d, 7' % (S_T1, S_IDX)); a('s_mul_i32 s%d, s%d, 7' % (S_T1, S_T1)); a('s_add_u32 s%d, s%d, s%d' % (S_A, S_T0, S_T1))
GW = 32
UW = 64
GA = 96
UA = 104
GX = 112
GT = 116
GV = 8
a('s_lshl_b32 s%d, s%d, 9' % (S_T0, S_B)); a('s_lshl_b32 s%d, s%d, 6' % (S_T1, S_W)); a('s_add_u32 s%d, s%d, s%d' % (S_C, S_T0, S_T1))
a('s_mul_i32 s%d, s%d, 7168' % (S_T0, S_C)); a('s_lshl_b32 s%d, s%d, 7' % (S_T1, S_A)); a('s_add_u32 s%d, s%d, s%d' % (S_T0, S_T0, S_T1))
base_add(S_BA, S_WG, S_T0)
base_add(S_BB, S_WU, S_T0)
a('v_and_b32 %s, 0x38, v0' % v(VA)); a('v_mul_u32_u24 %s, 7168, %s' % (v(VA), v(VA)))
a('v_and_b32 %s, 7, v0' % v(VB)); a('v_lshl_add_u32 %s, %s, 4, %s' % (v(VA), v(VB), v(VA)))
tile_loads(GW, VA, S_BA, 7168, 8)
tile_loads(UW, VA, S_BB, 7168, 8)
a('s_lshl_b32 s%d, s%d, 9' % (S_T0, S_W))
base_add(S_BA, S_WS, S_T0, WS_HS)
a('v_and_b32 %s, 31, v0' % v(VB)); a('v_lshlrev_b32 %s, 4, %s' % (v(VB), v(VB)))
a('v_add_u32 %s, s%d, %s' % (v(VC), S_T0, v(VB)))
a('s_lshl_b32 s%d, s%d, 8' % (S_T0, S_W))
col_addr(VD, U, S_T0)
a('s_waitcnt vmcnt(0)')
stamp(5)
poll(lambda: a('global_load_dwordx4 %s, %s, %s sc1' % (v(G0, 4), v(VB), sp(S_BA))),
     lambda: tag_check([G0], GT, GT + 1, GT + 2))
stamp(6)
untag([G0 + e for e in range(4)])
set_exec(0xffffffff)
a('ds_write_b128 %s, %s offset:%d' % (v(VC), v(G0, 4), L_HS))
set_exec(-1)
a('s_waitcnt lgkmcnt(0)')
a('s_barrier')
a('v_lshlrev_b32 %s, 4, v0' % v(U))
for i in range(4): a('ds_read_b128 %s, %s offset:%d' % (v(GV + 4 * i, 4), v(U), L_HS + 1024 * i))
a('v_and_b32 %s, 0x38, v0' % v(U + 1)); a('s_lshl_b32 s%d, s%d, 2' % (S_T0, S_C)); a('v_lshl_add_u32 %s, %s, 2, s%d' % (v(U + 1), v(U + 1), S_T0))
a('ds_read_b128 %s, %s offset:%d' % (v(GA, 4), v(U + 1), L_HS))
a('ds_read_b128 %s, %s offset:%d' % (v(GA + 4, 4), v(U + 1), L_HS + 16))
a('s_waitcnt lgkmcnt(2)')
ln_stats(GV, GT)
a('s_waitcnt lgkmcnt(0)')
ln_apply(GA, GT, GT + 1, GX, GT + 2)
gemv(GW, GX, GA, GT, 8, [None] * 4)
gemv(UW, GX, UA, GT, 8, [None] * 4)
reduce8(GA)
reduce8(UA)
a('ds_write_b32 %s, %s offset:%d' % (v(VD), v(GA), L_RED))
a('ds_write_b32 %s, %s offset:%d' % (v(VD), v(UA), L_RED + 2048))
a('s_waitcnt lgkmcnt(0)')
a('s_barrier')
stamp(7)
a('s_cmp_ge_u32 s%d, 2' % S_W)
a('s_cbranch_scc1 L_P_done')
a('s_lshl_b32 s%d, s%d, 11' % (S_T0, S_W))
a('v_lshl_add_u32 %s, v0, 2, s%d' % (v(VC), S_T0))
finish8(8, VC, L_RED, GT)
pub_lane(GT, V_TAG, V_FF)
a('s_lshl_b32 s%d, s%d, 1' % (S_T0, S_A)); a('s_add_u32 s%d, s%d, s%d' % (S_T0, S_T0, S_B)); a('s_lshl_b32 s%d, s%d, 9' % (S_T0, S_T0))
a('s_lshl_b32 s%d, s%d, 8' % (S_T1, S_W)); a('s_add_u32 s%d, s%d, s%d' % (S_T0, S_T0, S_T1))
base_add(S_BB, S_WS, S_T0, WS_GP)
a('v_lshlrev_b32 %s, 2, v0' % v(VC))
a('global_store_dword %s, %s, %s sc1' % (v(VC), v(GT), sp(S_BB)))
a.label('L_P_done')
stamp(8)
write_stamps(9)
a.label('L_end')
a('s_endpgm')

body = a.finish()
tail = '''.section .rodata,"a"
.p2align 6
.amdhsa_kernel %s
  .amdhsa_next_free_vgpr 128
  .amdhsa_next_free_sgpr 96
  .amdhsa_accum_offset 128
  .amdhsa_group_segment_fixed_size 0
  .amdhsa_kernarg_size 96
  .amdhsa_user_sgpr_count 2
  .amdhsa_user_sgpr_kernarg_segment_ptr 1
  .amdhsa_system_sgpr_workgroup_id_x 1
  .amdhsa_float_denorm_mode_32 3
.end_amdhsa_kernel
''' % K
open(sys.argv[1], 'w').write('\n'.join(hdr) + '\n' + body + tail)
sys.stderr.write('nops inserted: %d, lines %d\n' % (a.ninserted, body.count('\n')))
```

```python
import sys
from asmlib import Asm

NAME = 'sequential_preLN__sliding_block_cached__glu_gated_reglu__decode'
OPT = dict(stamps=0, spin=400000, dbg=0, wowin=0, gwin=0, dwin=0, dtrig=1,
           owait=2, qwait=1, gwait=0, dwait=0, sleep=0, kearly=1, gafter=0, fineA=0, x4=1, olight=16, wotrig=2, gsplit=1, omap=1)
for x in sys.argv[2:]:
    k, v_ = x.split('='); assert k in OPT, k; OPT[k] = int(v_)
NW = 8

WS_EPOCH, WS_QP, WS_OP, WS_ML, WS_AP, WS_HS, WS_GP, WS_DP, WS_TS = 0, 0x1000, 0x20000, 0xA0000, 0xB0000, 0xD0000, 0xD8000, 0xE8000, 0x100000

WS_GP2 = 0xE6000
L_V   = 0
L_Q   = 32768
L_P   = L_Q + 2304
L_WM  = L_P + 2304
L_ST  = L_WM + 256
L_HS  = L_ST + 256
L_RED = L_HS + 4096
L_XO  = L_RED + 4096
L_DUM = L_XO + 2048
LDS_BYTES = L_DUM + 512

S_X, S_K, S_V, S_WQ, S_WO, S_WG, S_WU, S_WD, S_OUT, S_DBG, S_WS = 4, 6, 8, 10, 12, 16, 18, 20, 22, 24, 26
S_N = 28; S_W = 32; S_IDX = 33
S_A, S_B, S_C, S_D = 34, 35, 36, 37
S_T0, S_T1 = 38, 39
S_BA, S_BB = 40, 42
S_SELT01, S_SELT23, S_MASK = 46, 47, 48
S_SPIN = 49
S_M0, S_M1, S_LO = 50, 52, 54
S_E = 56
S_BC, S_BD = 58, 60
S_K1, S_K2 = 62, 63
S_TS = 64

a = Asm()
def sp(n): return 's[%d:%d]' % (n, n + 1)
def v(n, k=1): return 'v%d' % n if k == 1 else 'v[%d:%d]' % (n, n + k - 1)
_lbl = [0]
def newlabel(p):
    _lbl[0] += 1
    return 'L_%s_%d' % (p, _lbl[0])
DIAG = OPT['stamps'] or OPT['dbg']
def stamp(i):
    if DIAG: a('s_memrealtime %s' % sp(S_TS + 2 * i))
def set_exec(x):
    if x == -1:
        a('s_mov_b64 exec, -1'); return
    a('s_mov_b32 exec_lo, 0x%x' % (x & 0xffffffff)); a('s_mov_b32 exec_hi, 0x%x' % (x >> 32))
def dbg_stamps(wg, wave, pairs):
    if not OPT['dbg']: return
    L = newlabel('dbg')
    a('s_cmp_lg_u32 s2, %d' % wg); a('s_cbranch_scc1 %s' % L)
    a('s_cmp_lg_u32 s%d, %d' % (S_W, wave)); a('s_cbranch_scc1 %s' % L)
    a('s_waitcnt lgkmcnt(0)')
    set_exec(1)
    for slot, i in pairs:
        a('v_mov_b32 v1, s%d' % (S_TS + 2 * i)); a('v_mov_b32 v2, %d' % (slot * 4))
        a('global_store_dword v2, v1, %s' % sp(S_DBG))
    set_exec(-1)
    a.label(L)
def write_stamps(n):
    if OPT['dbg'] or not OPT['stamps']: return
    a('s_waitcnt lgkmcnt(0)')
    a('s_mov_b64 exec, -1')
    a('v_mov_b32 v1, 0')
    for i in range(n): a('v_writelane_b32 v1, s%d, %d' % (S_TS + 2 * i, i))
    a('s_mul_i32 s%d, s2, 9' % S_T0)
    a('s_add_u32 s%d, s%d, s%d' % (S_T0, S_T0, S_W))
    a('s_lshl_b32 s%d, s%d, 6' % (S_T0, S_T0))
    a('s_add_u32 s%d, s%d, %d' % (S_T0, S_T0, WS_TS))
    a('v_lshl_add_u32 v2, v0, 2, s%d' % S_T0)
    a('s_mov_b64 exec, 0xffff')
    a('global_store_dword v2, v1, %s' % sp(S_WS))

def base_add(dst, src, off_sgpr=None, off_imm=0):
    if off_sgpr is not None:
        a('s_add_u32 s%d, s%d, s%d' % (dst, src, off_sgpr)); a('s_addc_u32 s%d, s%d, 0' % (dst + 1, src + 1))
        if off_imm:
            a('s_add_u32 s%d, s%d, %d' % (dst, dst, off_imm)); a('s_addc_u32 s%d, s%d, 0' % (dst + 1, dst + 1))
    else:
        a('s_add_u32 s%d, s%d, %d' % (dst, src, off_imm)); a('s_addc_u32 s%d, s%d, 0' % (dst + 1, src + 1))

def tile_loads(dst, voff, base, stride, n, win=0, already=0):
    out = already
    for i in range(n):
        if stride <= 2048:
            per = 8192 // stride
            off = (i % per) * stride - 4096
            if i and i % per == 0:
                a('s_add_u32 s%d, s%d, %d' % (base, base, per * stride)); a('s_addc_u32 s%d, s%d, 0' % (base + 1, base + 1))
            offs = ' offset:%d' % off
        else:
            if i:
                a('s_add_u32 s%d, s%d, %d' % (base, base, stride)); a('s_addc_u32 s%d, s%d, 0' % (base + 1, base + 1))
            offs = ''
        if win and out >= win:
            a('s_waitcnt vmcnt(%d)' % (win - 1)); out = win - 1
        a('global_load_dwordx4 %s, %s, %s%s nt' % (v(dst + 4 * i, 4), v(voff), sp(base), offs))
        out += 1

DPP = 'row_mask:0xf bank_mask:0xf'
def dpp(ins, d, s0, s1, ctl): a('%s_dpp %s, %s, %s %s %s' % (ins, v(d), v(s0), v(s1), ctl, DPP))
def allreduce(op, x, t, bits):
    ins = {'add': 'v_add_f32', 'max': 'v_max_f32'}[op]
    for b in bits:
        if b == 0: dpp(ins, x, x, x, 'quad_perm:[1,0,3,2]')
        elif b == 1: dpp(ins, x, x, x, 'quad_perm:[2,3,0,1]')
        elif b == 2: dpp(ins, x, x, x, 'row_ror:4')
        elif b == 3: dpp(ins, x, x, x, 'row_ror:8')
        elif b == 'h': dpp(ins, x, x, x, 'row_half_mirror')
        elif b == 4:
            a('v_mov_b32 %s, %s' % (v(t), v(x))); a('v_permlane16_swap_b32 %s, %s' % (v(t), v(x))); a('%s %s, %s, %s' % (ins, v(x), v(x), v(t)))
        elif b == 5:
            a('v_mov_b32 %s, %s' % (v(t), v(x))); a('v_permlane32_swap_b32 %s, %s' % (v(t), v(x))); a('%s %s, %s, %s' % (ins, v(x), v(x), v(t)))

def bf16r(x, t):
    a('v_cvt_pk_bf16_f32 %s, %s, %s' % (v(t), v(x), v(x)))
    a('v_lshlrev_b32 %s, 16, %s' % (v(x), v(t)))

def tag_acc(g_list, t0, t1, acc):
    for i, g in enumerate(g_list):
        a('v_perm_b32 %s, %s, %s, s%d' % (v(t0), v(g + 1), v(g), S_SELT01))
        a('v_perm_b32 %s, %s, %s, s%d' % (v(t1), v(g + 3), v(g + 2), S_SELT23))
        if i == 0:
            a('v_or_b32 %s, %s, %s' % (v(acc), v(t0), v(t1)))
        else:
            a('v_or_b32 %s, %s, %s' % (v(t0), v(t0), v(t1)))
            a('v_xor_b32 %s, %s, %s' % (v(t0), v(t0), v(acc)))
            if i == 1: a('v_mov_b32 %s, %s' % (v(acc + 1), v(t0)))
            else: a('v_or_b32 %s, %s, %s' % (v(acc + 1), v(acc + 1), v(t0)))
    a('v_xor_b32 %s, s%d, %s' % (v(acc), S_N, v(acc)))
    if len(g_list) > 1: a('v_or_b32 %s, %s, %s' % (v(acc), v(acc), v(acc + 1)))
def tag_check(g_list, t0, t1, acc):
    tag_acc(g_list, t0, t1, acc)
    a('v_cmp_ne_u32 vcc, 0, %s' % v(acc))
def untag(regs):
    for r in regs: a('v_and_b32 %s, s%d, %s' % (v(r), S_MASK, v(r)))

def poll(loads, check):
    L = newlabel('poll'); Lx = newlabel('pollx')
    a('s_mov_b32 s%d, %d' % (S_SPIN, OPT['spin']))
    a.label(L)
    loads()
    a('s_waitcnt vmcnt(0)')
    check()
    a('s_cbranch_vccz %s' % Lx)
    if OPT['sleep']: a('s_sleep %d' % OPT['sleep'])
    a('s_sub_u32 s%d, s%d, 1' % (S_SPIN, S_SPIN))
    a('s_cmp_lg_u32 s%d, 0' % S_SPIN)
    a('s_cbranch_scc1 %s' % L)
    a.label(Lx)

def poll_light(loads, check, max_invalid):
    L = newlabel('lp'); Lx = newlabel('lpx')
    a('s_mov_b32 s%d, %d' % (S_SPIN, OPT['spin']))
    a.label(L)
    loads()
    a('s_waitcnt vmcnt(0)')
    check()
    a('s_bcnt1_i32_b64 s%d, vcc' % S_T1)
    a('s_cmp_le_u32 s%d, %d' % (S_T1, max_invalid))
    a('s_cbranch_scc1 %s' % Lx)
    a('s_sleep 1')
    a('s_sub_u32 s%d, s%d, 1' % (S_SPIN, S_SPIN))
    a('s_cmp_lg_u32 s%d, 0' % S_SPIN)
    a('s_cbranch_scc1 %s' % L)
    a.label(Lx)

M8, BT, TT = 112, 116, 124
def gemv(tiles, XD, masks, n, waits):
    for i in range(n):
        B = BT + 4 * (i & 1)
        for d in range(4): a('v_and_b32 %s, %s, %s' % (v(B + d), v(XD + i), v(masks + d)))
        if waits[i] is not None: a('s_waitcnt vmcnt(%d)' % waits[i])
        for (W, D) in tiles:
            a('v_mfma_f32_16x16x32_bf16 %s, %s, %s, %s' % (v(D, 4), v(W + 4 * i, 4), v(B, 4), '0' if i == 0 else v(D, 4)))

def scatter4_rows(G):
    a('v_permlane32_swap_b32 %s, %s' % (v(G), v(G + 2)))
    a('v_permlane32_swap_b32 %s, %s' % (v(G + 1), v(G + 3)))
    a('v_add_f32 %s, %s, %s' % (v(G), v(G), v(G + 2)))
    a('v_add_f32 %s, %s, %s' % (v(G + 1), v(G + 1), v(G + 3)))
    a('v_permlane16_swap_b32 %s, %s' % (v(G), v(G + 1)))
    a('v_add_f32 %s, %s, %s' % (v(G), v(G), v(G + 1)))

def fold1(D):
    a('v_permlane32_swap_b32 %s, %s' % (v(D), v(D + 1)))
    a('v_permlane32_swap_b32 %s, %s' % (v(D + 2), v(D + 3)))
    dpp('v_add_f32', D, D + 1, D, 'row_ror:8')
    dpp('v_add_f32', D + 2, D + 3, D + 2, 'row_ror:8')
def fold1_addr(dst, t, sbase):
    a('v_and_b32 %s, 7, v0' % v(dst)); a('v_lshlrev_b32 %s, 2, %s' % (v(dst), v(dst)))
    a('v_and_b32 %s, 16, v0' % v(t)); a('v_lshl_add_u32 %s, %s, 3, %s' % (v(dst), v(t), v(dst)))
    a('v_and_b32 %s, 32, v0' % v(t)); a('v_add3_u32 %s, %s, %s, s%d' % (v(dst), v(dst), v(t), sbase))
    dummy_if_bit3(dst, t)
def dummy_if_bit3(dst, t):
    a('v_and_b32 %s, 8, v0' % v(t)); a('v_cmp_ne_u32 vcc, 0, %s' % v(t))
    a('v_mov_b32 %s, %d' % (v(t), L_DUM)); a('v_cndmask_b32 %s, %s, %s, vcc' % (v(dst), v(dst), v(t)))

def ln_stats(VAL, T):
    s, tmp = T, T + 2
    a('v_add_f32 %s, %s, %s' % (v(s), v(VAL), v(VAL + 1)))
    a('v_add_f32 %s, %s, %s' % (v(T + 3), v(VAL + 2), v(VAL + 3)))
    for i in range(4, 16, 2):
        a('v_add_f32 %s, %s, %s' % (v(s), v(s), v(VAL + i)))
        a('v_add_f32 %s, %s, %s' % (v(T + 3), v(T + 3), v(VAL + i + 1)))
    a('v_add_f32 %s, %s, %s' % (v(s), v(s), v(T + 3)))
    allreduce('add', s, tmp, [0, 1, 2, 3, 4, 5])
    a('v_mul_f32 %s, 0x3a800000, %s' % (v(s), v(s)))
    q0, q1 = T + 3, T + 4
    for i in range(16): a('v_sub_f32 %s, %s, %s' % (v(VAL + i), v(VAL + i), v(s)))
    a('v_mul_f32 %s, %s, %s' % (v(q0), v(VAL), v(VAL)))
    a('v_mul_f32 %s, %s, %s' % (v(q1), v(VAL + 1), v(VAL + 1)))
    for i in range(2, 16, 2):
        a('v_fmac_f32 %s, %s, %s' % (v(q0), v(VAL + i), v(VAL + i)))
        a('v_fmac_f32 %s, %s, %s' % (v(q1), v(VAL + i + 1), v(VAL + i + 1)))
    a('v_add_f32 %s, %s, %s' % (v(q0), v(q0), v(q1)))
    allreduce('add', q0, tmp, [0, 1, 2, 3, 4, 5])
    a('v_mul_f32 %s, 0x3a800000, %s' % (v(q0), v(q0)))
    ln_tail(q0, s, T + 1, tmp)
def ln_tail(var, mean, rd, tmp):
    bf16r(var, tmp)
    a('v_add_f32 %s, 0x3727c5ac, %s' % (v(var), v(var)))
    bf16r(var, tmp)
    a('v_sqrt_f32 %s, %s' % (v(var), v(var)))
    bf16r(mean, tmp + 3 if False else tmp)
    bf16r(var, tmp)
    a('v_rcp_f32 %s, %s' % (v(rd), v(var)))
def ln_apply_dup(VN, n, M, RD, XD, T):
    for i in range(n): a('v_sub_f32 %s, %s, %s' % (v(VN + i), v(VN + i), v(M)))
    for p in range(n // 2): a('v_cvt_pk_bf16_f32 %s, %s, %s' % (v(T + p), v(VN + 2 * p), v(VN + 2 * p + 1)))
    for p in range(n // 2):
        a('v_lshlrev_b32 %s, 16, %s' % (v(VN + 2 * p), v(T + p)))
        a('v_and_b32 %s, 0xffff0000, %s' % (v(VN + 2 * p + 1), v(T + p)))
    for i in range(n): a('v_mul_f32 %s, %s, %s' % (v(VN + i), v(VN + i), v(RD)))
    for i in range(n): a('v_cvt_pk_bf16_f32 %s, %s, %s' % (v(XD + i), v(VN + i), v(VN + i)))

def pub_lane(val, vtag, vff):
    a('v_add_u32 %s, 0x80, %s' % (v(val), v(val)))
    a('v_bfi_b32 %s, %s, %s, %s' % (v(val), v(vff), v(vtag), v(val)))
def pub_gran(g, vff):
    for e in range(4): a('v_add_u32 %s, 0x80, %s' % (v(g + e), v(g + e)))
    for e in range(4): a('v_bfi_b32 %s, %s, s%d, %s' % (v(g + e), v(vff), S_N + e, v(g + e)))

def store_quads(val, voff, base, mask):
    if not OPT['x4']:
        if mask != 0x1111111111111111: set_exec(0x000f000f000f000f)
        a('global_store_dword %s, %s, %s sc1' % (v(voff), v(val), sp(base)))
        if mask != 0x1111111111111111: set_exec(-1)
        return
    for e in range(1, 4): a('v_mov_b32_dpp %s, %s quad_perm:[%d,%d,%d,%d] %s' % (v(val + e), v(val), e, e, e, e, DPP))
    set_exec(mask)
    a('global_store_dwordx4 %s, %s, %s sc1' % (v(voff), v(val, 4), sp(base)))
    set_exec(-1)

def finish8(n, addr, base_off, dst, step=1):
    for i in range(0, n, 2):
        if i + 1 < n: a('ds_read2st64_b32 %s, %s offset0:%d offset1:%d' % (v(dst + i, 2), v(addr), base_off // 256 + i * step, base_off // 256 + (i + 1) * step))
        else: a('ds_read_b32 %s, %s offset:%d' % (v(dst + i), v(addr), base_off + 256 * step * i))
    a('s_waitcnt lgkmcnt(0)')
    m = n
    while m > 1:
        h = (m + 1) // 2
        for i in range(m // 2): a('v_add_f32 %s, %s, %s' % (v(dst + i), v(dst + i), v(dst + h + i)))
        m = h

V_FF, V_TAG = 2, 3
def nonce():
    a('s_waitcnt lgkmcnt(0)')
    a('s_add_u32 s%d, s%d, 1' % (S_E, S_E))
    a('s_mul_i32 s%d, s%d, 0x01010101' % (S_N, S_E))
    a('s_lshr_b32 s%d, s%d, 8' % (S_N + 1, S_N))
    a('s_lshr_b32 s%d, s%d, 16' % (S_N + 2, S_N))
    a('s_lshr_b32 s%d, s%d, 24' % (S_N + 3, S_N))
    a('v_and_b32 v1, 3, v0')
    a('v_lshlrev_b32 v1, 3, v1')
    a('v_lshrrev_b32 %s, v1, s%d' % (v(V_TAG), S_N))
def consts():
    a('s_mov_b32 s%d, 0x0c0c0400' % S_SELT01)
    a('s_mov_b32 s%d, 0x04000c0c' % S_SELT23)
    a('s_mov_b32 s%d, 0xffffff00' % S_MASK)
    a('s_mov_b32 s%d, 0xaaaaaaaa' % S_M0); a('s_mov_b32 s%d, 0xaaaaaaaa' % (S_M0 + 1))
    a('s_mov_b32 s%d, 0xcccccccc' % S_M1); a('s_mov_b32 s%d, 0xcccccccc' % (S_M1 + 1))
    a('s_mov_b32 s%d, -1' % S_LO); a('s_mov_b32 s%d, 0' % (S_LO + 1))
    a('s_mov_b32 s%d, 0x3fb8aa3b' % S_K1)
    a('s_mov_b32 s%d, 0x3db504f3' % S_K2)
    a('v_mov_b32 %s, 0xff' % v(V_FF))
    a('v_and_b32 v1, 1, v0'); a('v_lshlrev_b32 v1, 4, v1')
    a('v_mov_b32 %s, 0xffff' % v(TT)); a('v_lshlrev_b32 %s, v1, %s' % (v(TT), v(TT)))
    a('v_bfe_u32 v1, v0, 1, 2')
    for d in range(4):
        a('v_cmp_eq_u32 vcc, %d, v1' % d)
        a('v_cndmask_b32 %s, 0, %s, vcc' % (v(M8 + d), v(TT)))

K = NAME + '_kernel'
hdr = ['; @launch grid=(256,1,1) block=(%d,1,1) lds=%d' % (64 * NW, LDS_BYTES),
       '.amdgcn_target "amdgcn-amd-amdhsa--gfx950"', '.text', '.globl %s' % K, '.p2align 8', '.type %s,@function' % K]
VA, VB, VC, VD = 4, 5, 6, 7
G0, U = 8, 24
W0, W1, DA, XD = 32, 64, 96, 104
KR = 48

a.label(K)
a('s_cmp_ge_u32 s2, 256')
a('s_cbranch_scc1 L_end')
stamp(0)
a('s_load_dwordx16 s[4:19], s[0:1], 0')
a('s_load_dwordx8 s[20:27], s[0:1], 64')
a('v_lshrrev_b32 v1, 6, v0')
a('v_and_b32 v0, 63, v0')
a('v_readfirstlane_b32 s%d, v1' % S_W)
a('s_and_b32 s%d, s2, 63' % S_A); a('s_lshr_b32 s%d, s2, 6' % S_B)
a('s_lshl_b32 s%d, s%d, 8' % (S_T0, S_B)); a('s_lshl_b32 s%d, s%d, 5' % (S_T1, S_W)); a('s_add_u32 s%d, s%d, s%d' % (S_C, S_T0, S_T1))
a('v_lshlrev_b32 %s, 5, v0' % v(VA))
a('v_lshrrev_b32 %s, 3, v0' % v(VB))
a('s_lshl_b32 s%d, s%d, 1' % (S_T0, S_C))
a('v_lshl_add_u32 %s, %s, 3, s%d' % (v(VC), v(VB), S_T0))
a('v_lshlrev_b32 %s, 15, %s' % (v(VB), v(VB)))
a('v_and_b32 %s, 7, v0' % v(VD))
a('v_lshl_add_u32 %s, %s, 4, %s' % (v(VB), v(VD), v(VB)))
a('s_lshl_b32 s%d, s%d, 13' % (S_T0, S_C)); a('s_lshl_b32 s%d, s%d, 7' % (S_T1, S_A)); a('s_add_u32 s%d, s%d, s%d' % (S_D, S_T0, S_T1))
a('s_lshr_b32 s%d, s2, 4' % S_T0); a('s_lshl_b32 s%d, s%d, 3' % (S_T0, S_T0))
a('s_and_b32 s%d, s2, 7' % S_T1); a('s_or_b32 s%d, s%d, s%d' % (S_IDX, S_T0, S_T1))
XG, XW, XV = 64, 88, 72
a('s_waitcnt lgkmcnt(0)')
base_add(S_BA, S_WQ, S_D)
a('global_load_dwordx4 %s, %s, %s' % (v(XG, 4), v(VA), sp(S_X)))
a('global_load_dwordx4 %s, %s, %s offset:16' % (v(XG + 4, 4), v(VA), sp(S_X)))
a('global_load_dwordx2 %s, %s, %s' % (v(XW, 2), v(VC), sp(S_X)))
tile_loads(W0, VB, S_BA, 8192, 4)
a('s_load_dword s%d, %s, %d' % (S_E, sp(S_WS), WS_EPOCH))
stamp(1)
a('s_and_b32 s%d, s%d, 7' % (S_T0, S_IDX)); a('s_lshr_b32 s%d, s%d, 1' % (S_T0, S_T0))
a('s_lshl_b32 s%d, s%d, 24' % (S_D, S_T0))
a('s_lshr_b32 s%d, s%d, 3' % (S_T0, S_IDX)); a('s_lshl_b32 s%d, s%d, 1' % (S_T0, S_T0))
a('s_and_b32 s%d, s%d, 1' % (S_T1, S_IDX)); a('s_or_b32 s%d, s%d, s%d' % (S_T0, S_T0, S_T1))
a('s_lshl_b32 s%d, s%d, 15' % (S_T0, S_T0)); a('s_add_u32 s%d, s%d, s%d' % (S_D, S_D, S_T0))
a('s_lshl_b32 s%d, s%d, 12' % (S_T1, S_W)); a('s_add_u32 s%d, s%d, s%d' % (S_D, S_D, S_T1))
a('s_add_u32 s%d, s%d, %d' % (S_D, S_D, 61440 * 256))
base_add(S_BC, S_K, S_D)
base_add(S_BD, S_V, S_D)
a('v_and_b32 %s, 7, v0' % v(VA)); a('v_lshlrev_b32 %s, 8, %s' % (v(VA), v(VA)))
a('v_and_b32 %s, 8, v0' % v(VD)); a('v_lshl_add_u32 %s, %s, 3, %s' % (v(VA), v(VD), v(VA)))
a('v_lshrrev_b32 %s, 4, v0' % v(VD)); a('v_lshl_add_u32 %s, %s, 4, %s' % (v(VA), v(VD), v(VA)))
def k_loads():
    for kg in range(2):
        for db in range(2):
            a('global_load_dwordx4 %s, %s, %s offset:%d nt' % (v(KR + 4 * (2 * kg + db), 4), v(VA), sp(S_BC), kg * 2048 + db * 128))
if OPT['kearly']:
    a('s_bitcmp1_b32 s2, 3')
    a('s_cbranch_scc0 L_noK')
    k_loads()
    a.label('L_noK')
NK = 0
consts()
a('s_lshl_b32 s%d, s%d, 8' % (S_T0, S_W)); a('s_add_u32 s%d, s%d, %d' % (S_T0, S_T0, L_RED))
fold1_addr(U, U + 1, S_T0)
a('s_lshr_b32 s%d, s%d, 4' % (S_T0, S_A)); a('s_lshl_b32 s%d, s%d, 14' % (S_T0, S_T0))
a('s_lshl_b32 s%d, s%d, 12' % (S_T1, S_B)); a('s_add_u32 s%d, s%d, s%d' % (S_T0, S_T0, S_T1))
a('s_and_b32 s%d, s%d, 15' % (S_T1, S_A)); a('s_lshl_b32 s%d, s%d, 8' % (S_T1, S_T1)); a('s_add_u32 s%d, s%d, s%d' % (S_T0, S_T0, S_T1))
base_add(S_BB, S_WS, S_T0, WS_QP)
a('v_lshlrev_b32 %s, 2, v0' % v(VC))
a('s_bitcmp1_b32 s2, 3')
a('s_cbranch_scc1 L_wx_P')
a('s_waitcnt vmcnt(4)')
a('s_branch L_wx')
a.label('L_wx_P')
a('s_waitcnt vmcnt(%d)' % (8 if OPT['kearly'] else 4))
a.label('L_wx')
for i in range(8):
    a('v_lshlrev_b32 %s, 16, %s' % (v(XV + 2 * i), v(XG + i)))
    a('v_and_b32 %s, 0xffff0000, %s' % (v(XV + 2 * i + 1), v(XG + i)))
ln_stats(XV, G0)
for i in range(2):
    a('v_lshlrev_b32 %s, 16, %s' % (v(XV + 2 * i), v(XW + i)))
    a('v_and_b32 %s, 0xffff0000, %s' % (v(XV + 2 * i + 1), v(XW + i)))
ln_apply_dup(XV, 4, G0, G0 + 1, XD, G0 + 2)
nonce()
a('s_bitcmp1_b32 s2, 3')
a('s_cbranch_scc1 L_wq_P')
a('s_waitcnt vmcnt(0)')
a('s_branch L_wq')
a.label('L_wq_P')
a('s_waitcnt vmcnt(%d)' % (4 if OPT['kearly'] else 0))
a.label('L_wq')
gemv([(W0, DA)], XD, M8, 4, [None] * 4)
stamp(2)
fold1(DA)
a('ds_write_b32 %s, %s' % (v(U), v(DA)))
a('ds_write_b32 %s, %s offset:64' % (v(U), v(DA + 2)))
a('s_waitcnt lgkmcnt(0)')
a('s_barrier')
a('s_cmp_lg_u32 s%d, 0' % S_W)
a('s_cbranch_scc1 L_Q_skip')
finish8(8, VC, L_RED, G0)
pub_lane(G0, V_TAG, V_FF)
store_quads(G0, VC, S_BB, 0x1111111111111111)
a.label('L_Q_skip')
a('s_bitcmp1_b32 s2, 3')
a('s_cbranch_scc1 L_P')

if OPT['omap']:
    a('s_and_b32 s%d, s%d, 7' % (S_T0, S_IDX)); a('s_lshl_b32 s%d, s%d, 2' % (S_T0, S_T0)); a('s_lshr_b32 s%d, s%d, 5' % (S_T1, S_IDX)); a('s_add_u32 s%d, s%d, s%d' % (S_A, S_T0, S_T1))
    a('s_bfe_u32 s%d, s%d, 0x20003' % (S_B, S_IDX))
else:
    a('s_lshr_b32 s%d, s%d, 2' % (S_A, S_IDX)); a('s_and_b32 s%d, s%d, 3' % (S_B, S_IDX))
a('s_lshl_b32 s%d, s%d, 7' % (S_T0, S_A)); a('s_lshl_b32 s%d, s%d, 4' % (S_T1, S_W)); a('s_add_u32 s%d, s%d, s%d' % (S_T0, S_T0, S_T1))
a('s_lshl_b32 s%d, s%d, 11' % (S_T0, S_T0)); a('s_lshl_b32 s%d, s%d, 9' % (S_T1, S_B)); a('s_add_u32 s%d, s%d, s%d' % (S_T0, S_T0, S_T1))
base_add(S_BA, S_WO, S_T0, 4096)
a('v_lshrrev_b32 %s, 5, v0' % v(VA)); a('v_lshlrev_b32 %s, 14, %s' % (v(VA), v(VA)))
a('v_and_b32 %s, 31, v0' % v(VB)); a('v_lshl_add_u32 %s, %s, 4, %s' % (v(VA), v(VB), v(VA)))
if OPT['wotrig'] == 2:
    a('s_waitcnt vmcnt(0)')
if OPT['wotrig'] == 1:
    a('s_cmp_lg_u32 s%d, 7' % S_W)
    a('s_cbranch_scc1 L_wotrig')
    a('s_lshr_b32 s%d, s%d, 3' % (S_T0, S_A)); a('s_lshl_b32 s%d, s%d, 14' % (S_T0, S_T0))
    base_add(S_BC, S_WS, S_T0, WS_QP)
    a('v_lshlrev_b32 %s, 8, v0' % v(VC))
    poll_light(lambda: a('global_load_dwordx4 %s, %s, %s sc1' % (v(G0, 4), v(VC), sp(S_BC))),
               lambda: tag_check([G0], G0 + 4, G0 + 5, G0 + 6), 0)
    a.label('L_wotrig')
a('s_barrier')
stamp(3)
tile_loads(W0, VA, S_BA, 2048, 8, OPT['wowin'])
a('s_lshl_b32 s%d, s%d, 14' % (S_T0, S_A)); a('s_lshl_b32 s%d, s%d, 6' % (S_T1, S_W)); a('s_add_u32 s%d, s%d, s%d' % (S_T0, S_T0, S_T1))
base_add(S_BA, S_WS, S_T0, WS_OP)
a('s_lshl_b32 s%d, s%d, 9' % (S_T0, S_A))
base_add(S_BC, S_WS, S_T0, WS_ML)
a('v_lshrrev_b32 %s, 2, v0' % v(VB))
a('v_and_b32 %s, 3, v0' % v(VC))
a('v_lshlrev_b32 %s, 4, %s' % (v(VC), v(VC)))
a('v_lshl_add_u32 %s, %s, 9, %s' % (v(VC), v(VB), v(VC)))
a('v_add_u32 %s, 0x2000, %s' % (v(VD), v(VC)))
a('v_lshlrev_b32 %s, 4, %s' % (v(VB), v(VB)))
M32 = 64
a('v_lshrrev_b32 v1, 1, v0'); a('v_xor_b32 v1, v1, v0'); a('v_and_b32 v1, 8, v1'); a('v_cmp_eq_u32 vcc, 0, v1')
for d in range(4): a('v_cndmask_b32 %s, 0, %s, vcc' % (v(M32 + d), v(M8 + d)))
a('s_lshl_b32 s%d, s%d, 8' % (S_T0, S_W)); a('s_add_u32 s%d, s%d, %d' % (S_T0, S_T0, L_XO))
a('v_and_b32 %s, 3, v0' % v(U + 4)); a('v_lshlrev_b32 %s, 4, %s' % (v(U + 4), v(U + 4)))
a('v_lshrrev_b32 %s, 4, v0' % v(U + 5)); a('v_lshlrev_b32 %s, 2, %s' % (v(U + 5), v(U + 5)))
a('v_add3_u32 %s, %s, %s, s%d' % (v(U + 4), v(U + 4), v(U + 5), S_T0))
a('v_lshrrev_b32 %s, 5, v0' % v(U + 5)); a('v_lshl_add_u32 %s, %s, 5, s%d' % (v(U + 5), v(U + 5), S_T0))
a('v_and_b32 %s, 7, v0' % v(U + 6)); a('v_lshlrev_b32 %s, 2, %s' % (v(U + 6), v(U + 6)))
a('v_and_b32 %s, 8, v0' % v(U + 7)); a('v_lshl_add_u32 %s, %s, 6, %s' % (v(U + 6), v(U + 7), v(U + 6)))
a('v_lshrrev_b32 %s, 4, v0' % v(U + 7)); a('v_lshl_add_u32 %s, %s, 7, %s' % (v(U + 6), v(U + 7), v(U + 6)))
a('s_lshl_b32 s%d, s%d, 10' % (S_T0, S_W)); a('v_add_u32 %s, s%d, %s' % (v(U + 6), S_T0, v(U + 6)))
a('s_lshl_b32 s%d, s%d, 5' % (S_T0, S_B)); a('s_add_u32 s%d, s%d, s%d' % (S_T0, S_T0, S_A)); a('s_lshl_b32 s%d, s%d, 10' % (S_T0, S_T0))
base_add(S_BB, S_WS, S_T0, WS_AP)
a('s_lshl_b32 s%d, s%d, 8' % (S_T0, S_W)); a('v_lshl_add_u32 %s, v0, 2, s%d' % (v(U + 7), S_T0))
a('s_waitcnt vmcnt(%d)' % OPT['owait'])
stamp(4)
T4 = 68
def o_loads():
    a('global_load_dwordx4 %s, %s, %s sc1' % (v(G0, 4), v(VC), sp(S_BA)))
    a('global_load_dwordx4 %s, %s, %s sc1' % (v(G0 + 4, 4), v(VD), sp(S_BA)))
    a('global_load_dwordx4 %s, %s, %s sc1' % (v(G0 + 8, 4), v(VB), sp(S_BC)))
    a('global_load_dwordx4 %s, %s, %s offset:256 sc1' % (v(G0 + 12, 4), v(VB), sp(S_BC)))
if OPT['olight'] < 64:
    def ml_loads():
        a('global_load_dwordx4 %s, %s, %s sc1' % (v(G0 + 8, 4), v(VB), sp(S_BC)))
        a('global_load_dwordx4 %s, %s, %s offset:256 sc1' % (v(G0 + 12, 4), v(VB), sp(S_BC)))
    poll_light(ml_loads, lambda: tag_check([G0 + 8, G0 + 12], T4, T4 + 1, T4 + 2), OPT['olight'])
poll(o_loads, lambda: tag_check([G0, G0 + 4, G0 + 8, G0 + 12], T4, T4 + 1, T4 + 2))
stamp(5)
M1, L1, M2, L2 = G0 + 8, G0 + 9, G0 + 12, G0 + 13
untag([M1, M2])
a('v_max_f32 %s, %s, %s' % (v(U), v(M1), v(M2)))
dpp('v_max_f32', U, U, U, 'row_ror:4')
untag([L1, L2])
dpp('v_max_f32', U, U, U, 'row_ror:8')
untag([G0 + i for i in range(4)])
allreduce('max', U, U + 1, [4])
untag([G0 + 4 + i for i in range(4)])
allreduce('max', U, U + 1, [5])
a('v_sub_f32 %s, %s, %s' % (v(M1), v(M1), v(U))); a('v_sub_f32 %s, %s, %s' % (v(M2), v(M2), v(U)))
a('v_mul_f32 %s, s%d, %s' % (v(M1), S_K1, v(M1))); a('v_mul_f32 %s, s%d, %s' % (v(M2), S_K1, v(M2)))
a('v_exp_f32 %s, %s' % (v(M1), v(M1))); a('v_exp_f32 %s, %s' % (v(M2), v(M2)))
a('v_mul_f32 %s, %s, %s' % (v(U + 2), v(M1), v(L1))); a('v_fmac_f32 %s, %s, %s' % (v(U + 2), v(M2), v(L2)))
for e in range(4): a('v_mul_f32 %s, %s, %s' % (v(G0 + e), v(G0 + e), v(M1)))
dpp('v_add_f32', U + 2, U + 2, U + 2, 'row_ror:4')
for e in range(4): a('v_fmac_f32 %s, %s, %s' % (v(G0 + e), v(G0 + 4 + e), v(M2)))
dpp('v_add_f32', U + 2, U + 2, U + 2, 'row_ror:8')
a('v_permlane32_swap_b32 %s, %s' % (v(G0), v(G0 + 2)))
a('v_permlane32_swap_b32 %s, %s' % (v(G0 + 1), v(G0 + 3)))
a('v_mov_b32 %s, %s' % (v(U + 1), v(U + 2)))
a('v_add_f32 %s, %s, %s' % (v(G0), v(G0), v(G0 + 2)))
a('v_add_f32 %s, %s, %s' % (v(G0 + 1), v(G0 + 1), v(G0 + 3)))
a('v_permlane16_swap_b32 %s, %s' % (v(U + 1), v(U + 2)))
a('v_permlane16_swap_b32 %s, %s' % (v(G0), v(G0 + 1)))
a('v_add_f32 %s, %s, %s' % (v(U + 2), v(U + 2), v(U + 1)))
a('v_add_f32 %s, %s, %s' % (v(G0), v(G0), v(G0 + 1)))
a('v_mov_b32 %s, %s' % (v(U + 1), v(U + 2)))
dpp('v_add_f32', G0, G0, G0, 'row_ror:4')
a('v_permlane32_swap_b32 %s, %s' % (v(U + 1), v(U + 2)))
dpp('v_add_f32', G0, G0, G0, 'row_ror:8')
a('v_add_f32 %s, %s, %s' % (v(U + 2), v(U + 2), v(U + 1)))
a('v_rcp_f32 %s, %s' % (v(U + 2), v(U + 2)))
a('v_mul_f32 %s, %s, %s' % (v(G0), v(G0), v(U + 2)))
a('v_cvt_pk_bf16_f32 %s, %s, %s' % (v(G0), v(G0), v(G0)))
a('ds_write_b32 %s, %s' % (v(U + 4), v(G0)))
a('s_waitcnt lgkmcnt(0)')
a('ds_read_b128 %s, %s' % (v(XD, 4), v(U + 5)))
a('ds_read_b128 %s, %s offset:16' % (v(XD + 4, 4), v(U + 5)))
a('s_waitcnt lgkmcnt(0)')
gemv([(W0, DA)], XD, M32, 8, [None] * 8)
for r in range(4): a('ds_write_b32 %s, %s offset:%d' % (v(U + 6), v(DA + r), L_V + 32 * r))
a('s_waitcnt lgkmcnt(0)')
a('s_barrier')
stamp(6)
a('s_cmp_ge_u32 s%d, 4' % S_W)
a('s_cbranch_scc1 L_O_skip')
finish8(8, U + 7, L_V, G0, step=4)
pub_lane(G0, V_TAG, V_FF)
store_quads(G0, U + 7, S_BB, 0x1111111111111111)
a.label('L_O_skip')
a('s_and_b32 s%d, s%d, 7' % (S_A, S_IDX)); a('s_lshr_b32 s%d, s%d, 3' % (S_B, S_IDX))
a('s_barrier')
stamp(7)
a('s_cmp_eq_u32 s%d, 7' % S_W)
a('s_cbranch_scc1 L_R_w7')
a('s_mul_i32 s%d, s%d, 448' % (S_T0, S_A)); a('s_lshl_b32 s%d, s%d, 6' % (S_T1, S_W)); a('s_add_u32 s%d, s%d, s%d' % (S_T0, S_T0, S_T1))
a('s_lshl_b32 s%d, s%d, 11' % (S_T0, S_T0)); a('s_lshl_b32 s%d, s%d, 7' % (S_T1, S_B)); a('s_add_u32 s%d, s%d, s%d' % (S_T0, S_T0, S_T1))
base_add(S_BA, S_WD, S_T0, 4096)
a('v_and_b32 %s, 0x38, v0' % v(VA)); a('v_lshlrev_b32 %s, 11, %s' % (v(VA), v(VA)))
a('v_and_b32 %s, 7, v0' % v(VB)); a('v_lshl_add_u32 %s, %s, 4, %s' % (v(VA), v(VB), v(VA)))
if OPT['dtrig']: a('s_barrier')
tile_loads(W0, VA, S_BA, 2048, 8, OPT['dwin'])
a('s_mul_i32 s%d, s%d, 7' % (S_T0, S_A)); a('s_add_u32 s%d, s%d, s%d' % (S_T0, S_T0, S_W)); a('s_lshl_b32 s%d, s%d, 10' % (S_T0, S_T0))
base_add(S_BA, S_WS, S_T0, WS_GP)
a('v_and_b32 %s, 1, v0' % v(VB)); a('v_lshlrev_b32 %s, 9, %s' % (v(VB), v(VB)))
a('v_and_b32 %s, 2, v0' % v(VC)); a('v_lshl_add_u32 %s, %s, 7, %s' % (v(VB), v(VC), v(VB)))
a('v_lshrrev_b32 %s, 2, v0' % v(VC)); a('v_lshl_add_u32 %s, %s, 4, %s' % (v(VB), v(VC), v(VB)))
a('s_lshl_b32 s%d, s%d, 8' % (S_T0, S_W)); a('s_add_u32 s%d, s%d, %d' % (S_T0, S_T0, L_XO))
a('v_lshl_add_u32 %s, %s, 4, s%d' % (v(U + 4), v(VC), S_T0))
a('v_and_b32 v1, 3, v0'); a('v_cmp_ne_u32 vcc, 0, v1'); a('v_mov_b32 v1, %d' % L_DUM); a('v_cndmask_b32 %s, %s, v1, vcc' % (v(U + 4), v(U + 4)))
a('v_and_b32 %s, 0x38, v0' % v(U + 5)); a('v_lshl_add_u32 %s, %s, 2, s%d' % (v(U + 5), v(U + 5), S_T0))
a('s_lshl_b32 s%d, s%d, 8' % (S_T0, S_W)); a('s_add_u32 s%d, s%d, %d' % (S_T0, S_T0, L_V))
fold1_addr(U + 6, U + 7, S_T0)
a('s_waitcnt vmcnt(%d)' % OPT['dwait'])
stamp(8)
if OPT['gsplit']:
    a('s_add_u32 s%d, s%d, 3' % (S_T0, S_A)); a('s_and_b32 s%d, s%d, 7' % (S_T0, S_T0))
    a('s_lshl_b32 s%d, s%d, 10' % (S_T1, S_A)); base_add(S_BC, S_WS, S_T1, WS_GP2)
    a('s_cmp_eq_u32 s%d, s%d' % (S_T0, S_W)); a('s_cbranch_scc1 L_D_slow')
poll(lambda: a('global_load_dwordx4 %s, %s, %s sc1' % (v(G0, 4), v(VB), sp(S_BA))),
     lambda: tag_check([G0], T4, T4 + 1, T4 + 2))
untag([G0 + e for e in range(4)])
if OPT['gsplit']:
    a('s_branch L_D_got')
    a.label('L_D_slow')
    def d2_loads():
        a('global_load_dwordx4 %s, %s, %s sc1' % (v(G0, 4), v(VB), sp(S_BA)))
        a('global_load_dwordx4 %s, %s, %s sc1' % (v(G0 + 4, 4), v(VB), sp(S_BC)))
    poll(d2_loads, lambda: tag_check([G0, G0 + 4], T4, T4 + 1, T4 + 2))
    untag([G0 + e for e in range(8)])
    for e in range(4): a('v_add_f32 %s, %s, %s' % (v(G0 + e), v(G0 + e), v(G0 + 4 + e)))
    a.label('L_D_got')
stamp(9)
for e in range(4): dpp('v_add_f32', G0 + e, G0 + e, G0 + e, 'quad_perm:[1,0,3,2]')
for p in range(2): a('v_cvt_pk_bf16_f32 %s, %s, %s' % (v(U + p), v(G0 + 2 * p), v(G0 + 2 * p + 1)))
for p in range(2):
    a('v_lshlrev_b32 %s, 16, %s' % (v(G0 + 2 * p), v(U + p)))
    a('v_and_b32 %s, 0xffff0000, %s' % (v(G0 + 2 * p + 1), v(U + p)))
for e in range(4): a('v_mov_b32_dpp %s, %s quad_perm:[2,3,0,1] %s' % (v(G0 + 4 + e), v(G0 + e), DPP))
for e in range(4): a('v_max_f32 %s, 0, %s' % (v(G0 + e), v(G0 + e)))
for e in range(4): a('v_mul_f32 %s, %s, %s' % (v(G0 + e), v(G0 + e), v(G0 + 4 + e)))
for e in range(4): a('v_cvt_pk_bf16_f32 %s, %s, %s' % (v(G0 + 8 + e), v(G0 + e), v(G0 + e)))
a('ds_write_b128 %s, %s' % (v(U + 4), v(G0 + 8, 4)))
a('s_waitcnt lgkmcnt(0)')
a('ds_read_b128 %s, %s' % (v(XD, 4), v(U + 5)))
a('ds_read_b128 %s, %s offset:16' % (v(XD + 4, 4), v(U + 5)))
a('s_waitcnt lgkmcnt(0)')
gemv([(W0, DA)], XD, M8, 8, [None] * 8)
fold1(DA)
a('ds_write_b32 %s, %s' % (v(U + 6), v(DA)))
a('ds_write_b32 %s, %s offset:64' % (v(U + 6), v(DA + 2)))
a('s_waitcnt lgkmcnt(0)')
a('s_barrier')
stamp(10)
dbg_stamps(0, 0, [(0, 0), (1, 1), (2, 2), (3, 3), (4, 5), (5, 7), (6, 9), (7, 10)])
write_stamps(11)
a('s_endpgm')

a.label('L_R_w7')
a('s_and_b32 s%d, s%d, 7' % (S_T0, S_IDX)); a('s_lshl_b32 s%d, s%d, 3' % (S_T0, S_T0)); a('s_bfe_u32 s%d, s%d, 0x30003' % (S_T1, S_IDX)); a('s_or_b32 s%d, s%d, s%d' % (S_D, S_T0, S_T1))
a('s_cmp_ge_u32 s%d, 64' % S_IDX)
a('s_cbranch_scc1 L_H_skip')
a('s_lshr_b32 s%d, s%d, 4' % (S_T0, S_D)); a('s_lshl_b32 s%d, s%d, 15' % (S_T0, S_T0))
a('s_and_b32 s%d, s%d, 15' % (S_T1, S_D)); a('s_lshl_b32 s%d, s%d, 6' % (S_T1, S_T1)); a('s_add_u32 s%d, s%d, s%d' % (S_T0, S_T0, S_T1))
base_add(S_BA, S_WS, S_T0, WS_AP)
base_add(S_BC, S_WS, None, WS_HS)
a('v_and_b32 %s, 15, v0' % v(VA)); a('v_lshlrev_b32 %s, 10, %s' % (v(VA), v(VA)))
a('v_lshrrev_b32 %s, 4, v0' % v(VB)); a('v_lshl_add_u32 %s, %s, 4, %s' % (v(VA), v(VB), v(VA)))
a('v_add_u32 %s, 0x4000, %s' % (v(VC), v(VA)))
a('v_and_b32 %s, 3, v0' % v(VD)); a('v_lshl_add_u32 %s, %s, 2, %s' % (v(VD), v(VB), v(VD)))
a('s_lshl_b32 s%d, s%d, 4' % (S_T0, S_D)); a('v_add_u32 %s, s%d, %s' % (v(VD), S_T0, v(VD)))
a('v_lshlrev_b32 %s, 1, %s' % (v(U), v(VD)))
a('global_load_ushort %s, %s, %s' % (v(U + 1), v(U), sp(S_X)))
a('v_lshlrev_b32 %s, 2, %s' % (v(VD), v(VD)))
def h_loads():
    a('global_load_dwordx4 %s, %s, %s sc1' % (v(G0, 4), v(VA), sp(S_BA)))
    a('global_load_dwordx4 %s, %s, %s sc1' % (v(G0 + 4, 4), v(VC), sp(S_BA)))
poll(h_loads, lambda: tag_check([G0, G0 + 4], T4, T4 + 1, T4 + 2))
stamp(8)
untag([G0 + i for i in range(8)])
for e in range(4): a('v_add_f32 %s, %s, %s' % (v(G0 + e), v(G0 + e), v(G0 + 4 + e)))
for e in range(2):
    a('v_cndmask_b32 %s, %s, %s, %s' % (v(G0 + 4 + e), v(G0 + e), v(G0 + 2 + e), sp(S_M1)))
    a('v_cndmask_b32 %s, %s, %s, %s' % (v(G0 + 6 + e), v(G0 + 2 + e), v(G0 + e), sp(S_M1)))
for e in range(2): dpp('v_add_f32', G0 + e, G0 + 6 + e, G0 + 4 + e, 'quad_perm:[2,3,0,1]')
a('v_cndmask_b32 %s, %s, %s, %s' % (v(G0 + 4), v(G0), v(G0 + 1), sp(S_M0)))
a('v_cndmask_b32 %s, %s, %s, %s' % (v(G0 + 5), v(G0 + 1), v(G0), sp(S_M0)))
dpp('v_add_f32', G0, G0 + 5, G0 + 4, 'quad_perm:[1,0,3,2]')
a('v_lshlrev_b32 %s, 16, %s' % (v(U + 1), v(U + 1)))
dpp('v_add_f32', G0, G0, G0, 'row_ror:4')
dpp('v_add_f32', G0, G0, G0, 'row_ror:8')
bf16r(G0, T4)
a('v_add_f32 %s, %s, %s' % (v(G0), v(G0), v(U + 1)))
bf16r(G0, T4)
a('v_bfi_b32 %s, %s, %s, %s' % (v(G0), v(V_FF), v(V_TAG), v(G0)))
store_quads(G0, VD, S_BC, 0x0001000100010001)
if OPT['dtrig']: a('s_branch L_H_done')
a.label('L_H_skip')
if OPT['dtrig']:
    a('s_lshl_b32 s%d, s%d, 6' % (S_T0, S_D))
    base_add(S_BA, S_WS, S_T0, WS_HS)
    a('v_and_b32 %s, 3, v0' % v(VA)); a('v_lshlrev_b32 %s, 4, %s' % (v(VA), v(VA)))
    poll(lambda: a('global_load_dwordx4 %s, %s, %s sc1' % (v(G0, 4), v(VA), sp(S_BA))),
         lambda: tag_check([G0], T4, T4 + 1, T4 + 2))
    a.label('L_H_done')
    a('s_barrier')
stamp(9)
a('v_lshlrev_b32 %s, 2, v0' % v(U + 4))
a('s_lshl_b32 s%d, s%d, 3' % (S_T0, S_B)); a('s_add_u32 s%d, s%d, s%d' % (S_T0, S_T0, S_A)); a('s_lshl_b32 s%d, s%d, 8' % (S_T0, S_T0))
base_add(S_BB, S_WS, S_T0, WS_DP)
a('s_lshl_b32 s%d, s%d, 11' % (S_T0, S_B))
base_add(S_BA, S_WS, S_T0, WS_DP)
base_add(S_BC, S_WS, None, WS_HS)
a('v_and_b32 %s, 15, v0' % v(VA)); a('v_lshlrev_b32 %s, 4, %s' % (v(VA), v(VA)))
a('v_lshrrev_b32 %s, 4, v0' % v(VB)); a('v_lshl_add_u32 %s, %s, 8, %s' % (v(VA), v(VB), v(VA)))
a('v_and_b32 %s, 15, v0' % v(VC)); a('v_lshl_add_u32 %s, %s, 2, %s' % (v(VC), v(VC), v(VB)))
a('s_lshl_b32 s%d, s%d, 6' % (S_T0, S_B)); a('v_add_u32 %s, s%d, %s' % (v(VC), S_T0, v(VC)))
a('v_lshlrev_b32 %s, 2, %s' % (v(VD), v(VC)))
a('v_lshlrev_b32 %s, 1, %s' % (v(VC), v(VC)))
a('v_lshlrev_b32 %s, 3, %s' % (v(U), v(VB))); a('v_lshrrev_b32 %s, %s, s%d' % (v(U), v(U), S_N))
a('s_and_b32 s%d, s%d, 7' % (S_T0, S_B))
a('s_barrier')
finish8(7, U + 4, L_V, 72)
pub_lane(72, V_TAG, V_FF)
store_quads(72, U + 4, S_BB, 0x1111111111111111)
stamp(10)
a('s_cmp_lg_u32 s%d, s%d' % (S_T0, S_A))
a('s_cbranch_scc1 L_F_skip')
def f_loads():
    a('global_load_dwordx4 %s, %s, %s sc1' % (v(G0, 4), v(VA), sp(S_BA)))
    a('global_load_dwordx4 %s, %s, %s offset:1024 sc1' % (v(G0 + 4, 4), v(VA), sp(S_BA)))
    a('global_load_dword %s, %s, %s sc1' % (v(G0 + 8), v(VD), sp(S_BC)))
def f_check():
    tag_acc([G0, G0 + 4], T4, T4 + 1, T4 + 2)
    a('v_xor_b32 %s, %s, %s' % (v(T4), v(G0 + 8), v(U)))
    a('v_and_b32 %s, 0xff, %s' % (v(T4), v(T4)))
    a('v_or_b32 %s, %s, %s' % (v(T4 + 2), v(T4 + 2), v(T4)))
    a('v_cmp_ne_u32 vcc, 0, %s' % v(T4 + 2))
poll(f_loads, f_check)
stamp(11)
untag([G0 + i for i in range(9)])
for e in range(4): a('v_add_f32 %s, %s, %s' % (v(G0 + e), v(G0 + e), v(G0 + 4 + e)))
scatter4_rows(G0)
bf16r(G0, T4)
a('v_add_f32 %s, %s, %s' % (v(G0), v(G0), v(G0 + 8)))
a('v_cvt_pk_bf16_f32 %s, %s, %s' % (v(G0), v(G0), v(G0)))
a('global_store_short %s, %s, %s' % (v(VC), v(G0), sp(S_OUT)))
a('s_cmp_lg_u32 s%d, 0' % S_B)
a('s_cbranch_scc1 L_F_skip')
a('v_mov_b32 %s, s%d' % (v(U), S_E)); a('v_mov_b32 %s, 0' % v(U + 1))
set_exec(1)
a('global_store_dword %s, %s, %s sc1' % (v(U + 1), v(U), sp(S_WS)))
set_exec(-1)
a.label('L_F_skip')
stamp(12)
dbg_stamps(0, 7, [(15, 12)])
write_stamps(13)
a('s_endpgm')

a.label('L_P')
VT, QF, SD, PF, OD, LD, ON = 64, 80, 88, 32, 96, 100, 104
PT = 116
a('v_lshrrev_b32 %s, 4, v0' % v(U))
a('v_lshlrev_b32 %s, 1, %s' % (v(VC), v(U)))
a('v_and_b32 %s, 15, v0' % v(VD)); a('v_xor_b32 %s, %s, %s' % (v(VC), v(VC), v(VD)))
a('v_lshlrev_b32 %s, 4, %s' % (v(VC), v(VC)))
a('v_lshl_add_u32 %s, %s, 8, %s' % (v(VC), v(U), v(VC)))
a('v_xor_b32 %s, 0x80, %s' % (v(VD), v(VC)))
a('s_lshl_b32 s%d, s%d, 12' % (S_T0, S_W)); a('s_add_u32 s%d, s%d, %d' % (S_T0, S_T0, L_V))
a('s_mov_b32 m0, s%d' % S_T0)
a('s_barrier')
stamp(3)
if not OPT['kearly']: k_loads()
for n in range(4):
    a('global_load_lds_dwordx4 %s, %s offset:%d nt' % (v(VC if n < 2 else VD), sp(S_BD), n * 1024))
a('s_and_b32 s%d, s%d, 7' % (S_T0, S_IDX)); a('s_lshr_b32 s%d, s%d, 1' % (S_A, S_T0))
a('s_lshr_b32 s%d, s%d, 3' % (S_T0, S_IDX)); a('s_lshl_b32 s%d, s%d, 1' % (S_T0, S_T0))
a('s_and_b32 s%d, s%d, 1' % (S_T1, S_IDX)); a('s_or_b32 s%d, s%d, s%d' % (S_B, S_T0, S_T1))
a('s_lshl_b32 s%d, s%d, 14' % (S_T0, S_A)); a('s_lshl_b32 s%d, s%d, 9' % (S_T1, S_W)); a('s_add_u32 s%d, s%d, s%d' % (S_T0, S_T0, S_T1))
base_add(S_BA, S_WS, S_T0, WS_QP)
a('v_lshrrev_b32 %s, 5, v0' % v(VA)); a('v_lshlrev_b32 %s, 13, %s' % (v(VA), v(VA)))
a('v_and_b32 %s, 31, v0' % v(VB)); a('v_lshl_add_u32 %s, %s, 4, %s' % (v(VA), v(VB), v(VA)))
a('v_add_u32 %s, 0x1000, %s' % (v(U + 1), v(VA)))
a('v_mov_b32 %s, %s' % (v(PT + 6), v(U + 1)))
a('s_mul_i32 s%d, s%d, 272' % (S_T0, S_W)); a('s_add_u32 s%d, s%d, %d' % (S_T0, S_T0, L_Q))
a('v_lshrrev_b32 %s, 5, v0' % v(VC)); a('v_lshlrev_b32 %s, 2, %s' % (v(VC), v(VC)))
a('v_lshl_add_u32 %s, %s, 3, %s' % (v(VC), v(VB), v(VC))); a('v_add_u32 %s, s%d, %s' % (v(VC), S_T0, v(VC)))
a('v_and_b32 %s, 7, v0' % v(VD)); a('v_mul_u32_u24 %s, 272, %s' % (v(U + 4), v(VD)))
a('v_and_b32 %s, 8, v0' % v(U + 1)); a('v_lshl_add_u32 %s, %s, 3, %s' % (v(VD), v(U + 1), v(U + 4)))
a('v_lshl_add_u32 %s, %s, 4, %s' % (v(VD), v(U), v(VD)))
a('v_bfe_u32 %s, v0, 2, 2' % v(U + 1))
a('v_lshl_add_u32 %s, %s, 3, %s' % (v(U + 2), v(U), v(U + 1)))
a('v_lshlrev_b32 %s, 8, %s' % (v(U + 2), v(U + 2)))
a('v_and_b32 %s, 1, %s' % (v(U + 6), v(U))); a('v_lshl_or_b32 %s, %s, 2, %s' % (v(U + 6), v(U + 6), v(U + 1)))
a('v_xor_b32 %s, s%d, %s' % (v(U + 6), S_W, v(U + 6)))
a('v_lshlrev_b32 %s, 5, %s' % (v(U + 6), v(U + 6)))
a('v_bfe_u32 %s, v0, 1, 1' % v(U + 1)); a('v_lshl_add_u32 %s, %s, 4, %s' % (v(U + 6), v(U + 1), v(U + 6)))
a('v_and_b32 %s, 1, v0' % v(U + 1)); a('v_lshl_add_u32 %s, %s, 3, %s' % (v(U + 6), v(U + 1), v(U + 6)))
a('v_add_u32 %s, %s, %s' % (v(U + 6), v(U + 6), v(U + 2)))
a('v_and_b32 %s, 7, v0' % v(U + 2)); a('v_lshlrev_b32 %s, 5, %s' % (v(U + 2), v(U + 2)))
a('s_lshl_b32 s%d, s%d, 2' % (S_T0, S_W)); a('s_add_u32 s%d, s%d, %d' % (S_T0, S_T0, L_WM)); a('v_add_u32 %s, s%d, %s' % (v(U + 3), S_T0, v(U + 2)))
a('v_cmp_lt_u32 vcc, 7, v0'); a('v_mov_b32 v1, %d' % L_DUM); a('v_cndmask_b32 %s, %s, v1, vcc' % (v(U + 3), v(U + 3)))
a('v_lshl_add_u32 %s, %s, 3, %s' % (v(U + 5), v(U), v(U + 4)))
a('s_lshl_b32 s%d, s%d, 5' % (S_T0, S_W)); a('s_add_u32 s%d, s%d, %d' % (S_T0, S_T0, L_P)); a('v_add_u32 %s, s%d, %s' % (v(U + 5), S_T0, v(U + 5)))
dummy_if_bit3(U + 5, U + 1)
a('v_lshl_add_u32 %s, %s, 4, %s' % (v(U + 7), v(U), v(U + 4)))
a('s_lshl_b32 s%d, s%d, 17' % (S_T0, S_A)); a('s_lshl_b32 s%d, s%d, 9' % (S_T1, S_B)); a('s_add_u32 s%d, s%d, s%d' % (S_T0, S_T0, S_T1))
a('s_lshl_b32 s%d, s%d, 6' % (S_T1, S_W)); a('s_add_u32 s%d, s%d, s%d' % (S_T0, S_T0, S_T1))
base_add(S_BB, S_WS, S_T0, WS_OP)
a('s_lshl_b32 s%d, s%d, 12' % (S_T0, S_A)); a('s_lshl_b32 s%d, s%d, 4' % (S_T1, S_B)); a('s_add_u32 s%d, s%d, s%d' % (S_T0, S_T0, S_T1))
base_add(S_BC, S_WS, S_T0, WS_ML)
a('v_and_b32 %s, 7, v0' % v(PT + 4)); a('v_lshlrev_b32 %s, 9, %s' % (v(PT + 5), v(PT + 4)))
a('v_lshlrev_b32 %s, 14, %s' % (v(PT + 4), v(PT + 4))); a('v_lshl_add_u32 %s, %s, 4, %s' % (v(PT + 4), v(U), v(PT + 4)))
for d in range(4): a('v_mov_b32 %s, 0x3f803f80' % v(ON + d))
a('s_waitcnt vmcnt(%d)' % OPT['qwait'])
stamp(4)
def q_loads():
    a('global_load_dwordx4 %s, %s, %s sc1' % (v(G0, 4), v(VA), sp(S_BA)))
    a('global_load_dwordx4 %s, %s, %s sc1' % (v(G0 + 4, 4), v(PT + 6), sp(S_BA)))
poll(q_loads, lambda: tag_check([G0, G0 + 4], PT, PT + 1, PT + 2))
stamp(5)
untag([G0 + e for e in range(8)])
for e in range(4): a('v_add_f32 %s, %s, %s' % (v(G0 + e), v(G0 + e), v(G0 + 4 + e)))
a('v_permlane32_swap_b32 %s, %s' % (v(G0), v(G0 + 2)))
a('v_permlane32_swap_b32 %s, %s' % (v(G0 + 1), v(G0 + 3)))
a('v_add_f32 %s, %s, %s' % (v(G0), v(G0), v(G0 + 2)))
a('v_add_f32 %s, %s, %s' % (v(G0 + 1), v(G0 + 1), v(G0 + 3)))
a('v_cvt_pk_bf16_f32 %s, %s, %s' % (v(G0), v(G0), v(G0 + 1)))
a('ds_write_b32 %s, %s' % (v(VC), v(G0)))
a('s_waitcnt lgkmcnt(0)')
a('s_barrier')
if OPT['fineA']: stamp(11)
a('ds_read_b128 %s, %s offset:%d' % (v(QF, 4), v(VD), L_Q))
a('ds_read_b128 %s, %s offset:%d' % (v(QF + 4, 4), v(VD), L_Q + 128))
for s_ in range(4):
    for t_ in range(2):
        a('ds_read_b64_tr_b16 %s, %s offset:%d' % (v(VT + 4 * s_ + 2 * t_, 2), v(U + 6), L_V + s_ * 8192 + t_ * 1024))
a('s_waitcnt lgkmcnt(9)')
for kg in range(2): a('v_mfma_f32_16x16x32_bf16 %s, %s, %s, 0' % (v(SD + 4 * kg, 4), v(KR + 4 * (2 * kg), 4), v(QF, 4)))
a('s_waitcnt lgkmcnt(8)')
for kg in range(2): a('v_mfma_f32_16x16x32_bf16 %s, %s, %s, %s' % (v(SD + 4 * kg, 4), v(KR + 4 * (2 * kg + 1), 4), v(QF + 4, 4), v(SD + 4 * kg, 4)))
for r in range(4): a('v_permlane32_swap_b32 %s, %s' % (v(SD + r), v(SD + 4 + r)))
for r in range(4): dpp('v_add_f32', SD + r, SD + 4 + r, SD + r, 'row_ror:8')
for p in range(2): a('v_cvt_pk_bf16_f32 %s, %s, %s' % (v(SD + 4 + p), v(SD + 2 * p), v(SD + 2 * p + 1)))
for p in range(2):
    a('v_lshlrev_b32 %s, 16, %s' % (v(SD + 2 * p), v(SD + 4 + p)))
    a('v_and_b32 %s, 0xffff0000, %s' % (v(SD + 2 * p + 1), v(SD + 4 + p)))
for r in range(4): a('v_mul_f32 %s, s%d, %s' % (v(SD + r), S_K2, v(SD + r)))
for p in range(2): a('v_cvt_pk_bf16_f32 %s, %s, %s' % (v(SD + 4 + p), v(SD + 2 * p), v(SD + 2 * p + 1)))
for p in range(2):
    a('v_lshlrev_b32 %s, 16, %s' % (v(SD + 2 * p), v(SD + 4 + p)))
    a('v_and_b32 %s, 0xffff0000, %s' % (v(SD + 2 * p + 1), v(SD + 4 + p)))
a('v_max3_f32 %s, %s, %s, %s' % (v(G0 + 8), v(SD), v(SD + 1), v(SD + 2)))
a('v_max_f32 %s, %s, %s' % (v(G0 + 8), v(G0 + 8), v(SD + 3)))
allreduce('max', G0 + 8, G0 + 9, [4, 5])
if OPT['fineA']: stamp(12)
a('ds_write_b32 %s, %s' % (v(U + 3), v(G0 + 8)))
for r in range(4): a('v_mul_f32 %s, s%d, %s' % (v(SD + 4 + r), S_K1, v(SD + r)))
a('s_waitcnt lgkmcnt(0)')
a('s_barrier')
a('ds_read_b128 %s, %s offset:%d' % (v(G0, 4), v(U + 2), L_WM))
a('ds_read_b128 %s, %s offset:%d' % (v(G0 + 4, 4), v(U + 2), L_WM + 16))
a('s_waitcnt lgkmcnt(0)')
a('v_max3_f32 %s, %s, %s, %s' % (v(G0), v(G0), v(G0 + 1), v(G0 + 2)))
a('v_max3_f32 %s, %s, %s, %s' % (v(G0 + 3), v(G0 + 3), v(G0 + 4), v(G0 + 5)))
a('v_max3_f32 %s, %s, %s, %s' % (v(G0), v(G0), v(G0 + 6), v(G0 + 7)))
a('v_max_f32 %s, %s, %s' % (v(G0), v(G0), v(G0 + 3)))
a('v_mul_f32 %s, s%d, %s' % (v(G0 + 1), S_K1, v(G0)))
for r in range(4): a('v_sub_f32 %s, %s, %s' % (v(SD + r), v(SD + 4 + r), v(G0 + 1)))
for r in range(4): a('v_exp_f32 %s, %s' % (v(SD + r), v(SD + r)))
a('v_cvt_pk_bf16_f32 %s, %s, %s' % (v(SD + 4), v(SD), v(SD + 1)))
a('v_cvt_pk_bf16_f32 %s, %s, %s' % (v(SD + 5), v(SD + 2), v(SD + 3)))
a('ds_write_b64 %s, %s' % (v(U + 5), v(SD + 4, 2)))
a('s_waitcnt lgkmcnt(0)')
a('s_barrier')
if OPT['fineA']: stamp(13)
for s_ in range(4): a('ds_read_b128 %s, %s offset:%d' % (v(PF + 4 * s_, 4), v(U + 7), L_P + 64 * s_))
for s_ in range(4):
    a('s_waitcnt lgkmcnt(%d)' % (3 - s_))
    a('v_mfma_f32_16x16x32_bf16 %s, %s, %s, %s' % (v(OD, 4), v(VT + 4 * s_, 4), v(PF + 4 * s_, 4), '0' if s_ == 0 else v(OD, 4)))
a('s_cmp_lg_u32 s%d, 0' % S_W)
a('s_cbranch_scc1 L_A_nol')
for s_ in range(4):
    a('v_mfma_f32_16x16x32_bf16 %s, %s, %s, %s' % (v(LD, 4), v(ON, 4), v(PF + 4 * s_, 4), '0' if s_ == 0 else v(LD, 4)))
a.label('L_A_nol')
if OPT['fineA']: stamp(14)
pub_gran(OD, V_FF)
set_exec(0x00ff00ff00ff00ff)
a('global_store_dwordx4 %s, %s, %s sc1' % (v(PT + 4), v(OD, 4), sp(S_BB)))
set_exec(-1)
a('s_cmp_lg_u32 s%d, 0' % S_W)
a('s_cbranch_scc1 L_A_skip')
a('v_add_u32 %s, 0x80, %s' % (v(G0 + 1), v(LD)))
a('v_mov_b32 %s, 0' % v(G0 + 2)); a('v_mov_b32 %s, 0' % v(G0 + 3))
for e in range(4): a('v_bfi_b32 %s, %s, s%d, %s' % (v(G0 + e), v(V_FF), S_N + e, v(G0 + e)))
set_exec(0xff)
a('global_store_dwordx4 %s, %s, %s sc1' % (v(PT + 5), v(G0, 4), sp(S_BC)))
set_exec(-1)
a.label('L_A_skip')
if OPT['fineA']: stamp(15)
GW, UW, GD, UD = 32, 64, 96, 100
a('s_lshr_b32 s%d, s%d, 3' % (S_D, S_IDX))
a('s_and_b32 s%d, s%d, 1' % (S_B, S_D))
a('s_and_b32 s%d, s%d, 7' % (S_T1, S_IDX))
S_SL, S_SP = 44, 45
a('s_lshr_b32 s%d, s%d, 1' % (S_T0, S_D))
if OPT['gsplit']:
    a('s_add_u32 s%d, s%d, 3' % (S_SL, S_T1)); a('s_and_b32 s%d, s%d, 7' % (S_SL, S_SL))
    a('s_cmp_eq_u32 s%d, 7' % S_T0)
    a('s_cselect_b32 s%d, 1, 0' % S_SP)
    a('s_cselect_b32 s%d, s%d, s%d' % (S_T0, S_SL, S_T0))
    a('s_cmp_eq_u32 s%d, s%d' % (S_T0, S_SL))
    a('s_cselect_b32 s%d, 1, 0' % S_SL)
else:
    a('s_mov_b32 s%d, 0' % S_SL); a('s_mov_b32 s%d, 0' % S_SP)
a('s_mov_b32 s%d, s%d' % (S_D, S_T0))
a('s_min_u32 s%d, s%d, 6' % (S_T0, S_T0))
a('s_mul_i32 s%d, s%d, 7' % (S_T1, S_T1)); a('s_add_u32 s%d, s%d, s%d' % (S_A, S_T0, S_T1))
a('s_lshl_b32 s%d, s%d, 9' % (S_T0, S_B)); a('s_lshl_b32 s%d, s%d, 8' % (S_T1, S_SP)); a('s_add_u32 s%d, s%d, s%d' % (S_T0, S_T0, S_T1))
a('s_lshl_b32 s%d, s%d, 6' % (S_T1, S_W)); a('s_add_u32 s%d, s%d, s%d' % (S_C, S_T0, S_T1))
a('s_and_b32 s%d, s%d, 1023' % (S_C, S_C))
a('s_cmp_ge_u32 s%d, 4' % S_W); a('s_cselect_b32 s%d, s%d, 0' % (S_SL, S_SL))
a('s_mul_i32 s%d, s%d, 7168' % (S_T0, S_C)); a('s_lshl_b32 s%d, s%d, 7' % (S_T1, S_A)); a('s_add_u32 s%d, s%d, s%d' % (S_T0, S_T0, S_T1))
base_add(S_BA, S_WG, S_T0)
base_add(S_BB, S_WU, S_T0)
a('v_and_b32 %s, 0x38, v0' % v(VA)); a('v_mul_u32_u24 %s, 7168, %s' % (v(VA), v(VA)))
a('v_and_b32 %s, 7, v0' % v(VB)); a('v_lshl_add_u32 %s, %s, 4, %s' % (v(VA), v(VB), v(VA)))
a('s_barrier')
stamp(6)
a('s_cmp_ge_u32 s%d, 7' % S_D)
a('s_cbranch_scc1 L_P_done')
def g_loads():
    tile_loads(GW, VA, S_BA, 7168, 8, OPT['gwin'])
    tile_loads(UW, VA, S_BB, 7168, 8, OPT['gwin'], already=(min(8, OPT['gwin']) if OPT['gwin'] else 0))
if OPT['gafter']:
    a('s_mov_b64 s[88:89], %s' % sp(S_BA)); a('s_mov_b64 s[90:91], %s' % sp(S_BB))
else:
    a('s_cmp_lg_u32 s%d, 0' % S_SL); a('s_cbranch_scc1 L_G_noload')
    g_loads()
    a.label('L_G_noload')
a('s_lshl_b32 s%d, s%d, 9' % (S_T0, S_W))
base_add(S_BA, S_WS, S_T0, WS_HS)
a('v_and_b32 %s, 31, v0' % v(VB)); a('v_lshlrev_b32 %s, 4, %s' % (v(VB), v(VB)))
a('s_add_u32 s%d, s%d, %d' % (S_T0, S_T0, L_HS)); a('v_add_u32 %s, s%d, %s' % (v(VC), S_T0, v(VB)))
a('v_mov_b32 v1, %d' % L_DUM); a('v_cndmask_b32 %s, v1, %s, %s' % (v(VC), v(VC), sp(S_LO)))
a('s_lshl_b32 s%d, s%d, 4' % (S_T0, S_W)); a('s_add_u32 s%d, s%d, %d' % (S_T0, S_T0, L_ST))
a('v_mov_b32 %s, s%d' % (v(U + 2), S_T0)); a('v_mov_b32 v1, %d' % (L_DUM + 256)); a('v_cmp_eq_u32 vcc, 63, v0'); a('v_cndmask_b32 %s, v1, %s, vcc' % (v(U + 2), v(U + 2)))
a('v_and_b32 %s, 7, v0' % v(U + 3)); a('v_lshlrev_b32 %s, 4, %s' % (v(U + 3), v(U + 3)))
a('v_and_b32 %s, 0x38, v0' % v(U + 1)); a('s_lshl_b32 s%d, s%d, 2' % (S_T0, S_C)); a('v_lshl_add_u32 %s, %s, 2, s%d' % (v(U + 1), v(U + 1), S_T0))
a('v_and_b32 %s, 7, v0' % v(VD)); a('v_lshlrev_b32 %s, 2, %s' % (v(VD), v(VD)))
a('v_and_b32 v1, 16, v0'); a('v_lshl_add_u32 %s, v1, 3, %s' % (v(VD), v(VD)))
a('v_and_b32 v1, 32, v0'); a('v_lshl_add_u32 %s, v1, 6, %s' % (v(VD), v(VD)))
a('s_lshl_b32 s%d, s%d, 8' % (S_T0, S_W)); a('s_add_u32 s%d, s%d, %d' % (S_T0, S_T0, L_RED)); a('v_add_u32 %s, s%d, %s' % (v(VD), S_T0, v(VD)))
dummy_if_bit3(VD, U + 4)
a('s_and_b32 s%d, s%d, 7' % (S_T0, S_IDX)); a('s_add_u32 s%d, s%d, %d' % (S_T0, S_T0, (WS_GP2 - WS_GP) // 1024))
a('s_cmp_lg_u32 s%d, 0' % S_SP); a('s_cselect_b32 s%d, s%d, s%d' % (S_T0, S_T0, S_A))
a('s_lshl_b32 s%d, s%d, 1' % (S_T0, S_T0)); a('s_add_u32 s%d, s%d, s%d' % (S_T0, S_T0, S_B)); a('s_lshl_b32 s%d, s%d, 9' % (S_T0, S_T0))
a('s_lshl_b32 s%d, s%d, 8' % (S_T1, S_W)); a('s_add_u32 s%d, s%d, s%d' % (S_T0, S_T0, S_T1))
base_add(S_BB, S_WS, S_T0, WS_GP)
a('s_lshl_b32 s%d, s%d, 11' % (S_T0, S_W)); a('v_lshl_add_u32 %s, v0, 2, s%d' % (v(U + 5), S_T0))
a('v_lshlrev_b32 %s, 2, v0' % v(U + 6))
a('s_waitcnt vmcnt(%d)' % OPT['gwait'])
stamp(7)
GT = 104
poll(lambda: a('global_load_dwordx4 %s, %s, %s sc1' % (v(G0, 4), v(VB), sp(S_BA))),
     lambda: tag_check([G0], GT, GT + 1, GT + 2))
stamp(8)
if OPT['gafter']:
    a('s_mov_b64 %s, s[88:89]' % sp(S_BA)); a('s_mov_b64 %s, s[90:91]' % sp(S_BC))
    tile_loads(GW, VA, S_BA, 7168, 8); tile_loads(UW, VA, S_BC, 7168, 8)
    a('s_waitcnt vmcnt(0)')
untag([G0 + e for e in range(4)])
a('ds_write_b128 %s, %s' % (v(VC), v(G0, 4)))
a('v_readfirstlane_b32 s%d, %s' % (S_T0, v(G0)))
a('v_cndmask_b32 %s, %s, %s, %s' % (v(G0 + 4), v(G0 + 2), v(G0), sp(S_LO)))
a('v_cndmask_b32 %s, %s, %s, %s' % (v(G0 + 5), v(G0 + 3), v(G0 + 1), sp(S_LO)))
a('v_subrev_f32 %s, s%d, %s' % (v(G0 + 4), S_T0, v(G0 + 4)))
a('v_subrev_f32 %s, s%d, %s' % (v(G0 + 5), S_T0, v(G0 + 5)))
a('v_add_f32 %s, %s, %s' % (v(G0 + 9), v(G0 + 4), v(G0 + 5)))
a('v_mul_f32 %s, %s, %s' % (v(G0 + 10), v(G0 + 4), v(G0 + 4)))
a('v_fmac_f32 %s, %s, %s' % (v(G0 + 10), v(G0 + 5), v(G0 + 5)))
a('v_mov_b32 %s, s%d' % (v(G0 + 8), S_T0))
for ctl in ('quad_perm:[1,0,3,2]', 'quad_perm:[2,3,0,1]', 'row_ror:4', 'row_ror:8'):
    dpp('v_add_f32', G0 + 9, G0 + 9, G0 + 9, ctl); dpp('v_add_f32', G0 + 10, G0 + 10, G0 + 10, ctl)
for ctl in ('row_bcast:15 row_mask:0xa bank_mask:0xf', 'row_bcast:31 row_mask:0xc bank_mask:0xf'):
    a('v_add_f32_dpp %s, %s, %s %s' % (v(G0 + 9), v(G0 + 9), v(G0 + 9), ctl)); a('v_add_f32_dpp %s, %s, %s %s' % (v(G0 + 10), v(G0 + 10), v(G0 + 10), ctl))
a('ds_write_b96 %s, %s' % (v(U + 2), v(G0 + 8, 3)))
a('s_waitcnt lgkmcnt(0)')
a('s_barrier')
a('ds_read_b128 %s, %s offset:%d' % (v(G0, 4), v(U + 3), L_ST))
a('ds_read_b128 %s, %s offset:%d' % (v(G0 + 8, 4), v(U + 1), L_HS))
a('ds_read_b128 %s, %s offset:%d' % (v(G0 + 12, 4), v(U + 1), L_HS + 16))
a('s_waitcnt lgkmcnt(2)')
a('v_mul_f32 %s, 0x3c000000, %s' % (v(G0 + 4), v(G0 + 1)))
a('v_add_f32 %s, %s, %s' % (v(G0), v(G0), v(G0 + 4)))
a('v_fma_f32 %s, -%s, %s, %s' % (v(G0 + 2), v(G0 + 4), v(G0 + 1), v(G0 + 2)))
a('v_mov_b32 %s, %s' % (v(G0 + 5), v(G0)))
allreduce('add', G0 + 5, G0 + 6, [0, 1, 'h'])
a('v_mul_f32 %s, 0x3e000000, %s' % (v(G0 + 5), v(G0 + 5)))
a('v_sub_f32 %s, %s, %s' % (v(G0), v(G0), v(G0 + 5)))
a('v_mul_f32 %s, %s, %s' % (v(G0), v(G0), v(G0)))
a('v_fmac_f32 %s, 0x43000000, %s' % (v(G0 + 2), v(G0)))
allreduce('add', G0 + 2, G0 + 6, [0, 1, 'h'])
a('v_mul_f32 %s, 0x3a800000, %s' % (v(G0 + 2), v(G0 + 2)))
ln_tail(G0 + 2, G0 + 5, G0 + 3, G0 + 6)
a('s_waitcnt lgkmcnt(0)')
ln_apply_dup(G0 + 8, 8, G0 + 5, G0 + 3, XD, GT + 12)
a('s_cmp_lg_u32 s%d, 0' % S_SL); a('s_cbranch_scc1 L_G_zero')
gemv([(GW, GD), (UW, UD)], XD, M8, 8, [None] * 8)
a('s_branch L_G_fold')
a.label('L_G_zero')
for r in range(8): a('v_mov_b32 %s, 0' % v(GD + r))
a.label('L_G_fold')
for r in range(4): a('v_permlane32_swap_b32 %s, %s' % (v(GD + r), v(UD + r)))
for r in range(4): dpp('v_add_f32', GD + r, UD + r, GD + r, 'row_ror:8')
for r in range(4): a('ds_write_b32 %s, %s offset:%d' % (v(VD), v(GD + r), 32 * r))
a('s_waitcnt lgkmcnt(0)')
a('s_barrier')
stamp(9)
a('s_cmp_ge_u32 s%d, 2' % S_W)
a('s_cbranch_scc1 L_P_done')
finish8(8, U + 5, L_RED, G0)
pub_lane(G0, V_TAG, V_FF)
store_quads(G0, U + 6, S_BB, 0x1111111111111111)
a.label('L_P_done')
stamp(10)
dbg_stamps(8, 0, [(8, 0), (9, 1), (10, 5), (11, 6), (12, 7), (13, 8), (14, 9)])
write_stamps(16 if OPT['fineA'] else 11)
a.label('L_end')
a('s_endpgm')

body = a.finish()
tail = '''.section .rodata,"a"
.p2align 6
.amdhsa_kernel %s
  .amdhsa_next_free_vgpr 128
  .amdhsa_next_free_sgpr 100
  .amdhsa_accum_offset 128
  .amdhsa_group_segment_fixed_size 0
  .amdhsa_kernarg_size 96
  .amdhsa_user_sgpr_count 2
  .amdhsa_user_sgpr_kernarg_segment_ptr 1
  .amdhsa_system_sgpr_workgroup_id_x 1
  .amdhsa_float_denorm_mode_32 3
.end_amdhsa_kernel
''' % K
open(sys.argv[1], 'w').write('\n'.join(hdr) + '\n' + body + tail)
sys.stderr.write('nops inserted: %d, lines %d\n' % (a.ninserted, body.count('\n')))
```
